```python
import torch

def _softmax(x, axis=-1):
    return torch.softmax(x, dim=axis)
def _gelu(x):
    return torch.nn.functional.gelu(x, approximate="tanh")
def _silu(x):
    return torch.nn.functional.silu(x)
def _sigmoid(x):
    return torch.sigmoid(x)
def _layernorm(x, axis=-1, eps=1e-5):
    m = x.mean(dim=axis, keepdim=True)
    v = x.var(dim=axis, keepdim=True, unbiased=False)
    return (x - m) / torch.sqrt(v + eps)
def _scatter_add(tgt, idx, src, axis=0):
    return tgt.clone().index_add_(axis, idx, src)
def _segment_sum(src, seg, n):
    out = torch.zeros((n,) + src.shape[1:], dtype=src.dtype)
    return out.index_add_(0, seg, src)
def _pad(x, pw):
    flat = tuple(v for pair in reversed(pw) for v in pair)
    return torch.nn.functional.pad(x, flat)

kernel_name = 'gated_mix__ssm_conv_s4d__geglu_ffn__prompt'

def setup_inputs():

    _w = (lambda a: (lambda t: t.to(torch.bfloat16) if t.is_floating_point() else t)(torch.as_tensor(a)))
    def _A_setup():
        Bsz, L, D, N = 1, 2048, 512, 128
        return {
            "u": _w((lambda *s: torch.randn(*s, dtype=torch.bfloat16) * 0.05)(Bsz, L, D)),
            "log_A_real": _w((lambda *s: torch.randn(*s, dtype=torch.bfloat16) * 6.4)(D, N) * 0.5),
            "A_imag": _w((lambda *s: torch.randn(*s, dtype=torch.bfloat16) * 0.05)(D, N) * 3.14),
            "C_real": _w((lambda *s: torch.randn(*s, dtype=torch.bfloat16) * 0.05)(D, N) / N ** 0.5),
            "C_imag": _w((lambda *s: torch.randn(*s, dtype=torch.bfloat16) * 0.05)(D, N) / N ** 0.5),
            "log_dt": _w((lambda *s: torch.randn(*s, dtype=torch.bfloat16) * 0.05)(D) * 0.5 - 4.0),
            "D_skip": _w((lambda *s: torch.randn(*s, dtype=torch.bfloat16) * 0.05)(D)),
        }
    _A_in = _A_setup()

    def _B_setup():
        B, S, D, F = 1, 2048, 512, 1376
        return {
            "x": _w((lambda *s: torch.randn(*s, dtype=torch.bfloat16) * 0.05)(B, S, D)),
            "w_gate": _w((lambda *s: torch.randn(*s, dtype=torch.bfloat16) * 0.05)(D, F)),
            "w_up": _w((lambda *s: torch.randn(*s, dtype=torch.bfloat16) * 0.05)(D, F)),
            "w_down": _w((lambda *s: torch.randn(*s, dtype=torch.bfloat16) * 0.05)(F, D)),
        }
    _B_in = _B_setup()

    return {
        "A_u": _A_in["u"],
        "A_log_A_real": _A_in["log_A_real"],
        "A_A_imag": _A_in["A_imag"],
        "A_C_real": _A_in["C_real"],
        "A_C_imag": _A_in["C_imag"],
        "A_log_dt": _A_in["log_dt"],
        "A_D_skip": _A_in["D_skip"],
        "B_x": _B_in["x"],
        "B_w_gate": _B_in["w_gate"],
        "B_w_up": _B_in["w_up"],
        "B_w_down": _B_in["w_down"],
        "gate_w": _w((lambda *s: torch.randn(*s, dtype=torch.bfloat16) * 0.05)(512) * 16.0),
    }

def reference(A_u, A_log_A_real, A_A_imag, A_C_real, A_C_imag, A_log_dt, A_D_skip, B_x, B_w_gate, B_w_up, B_w_down, gate_w):
    def _A_ref(u, log_A_real, A_imag, C_real, C_imag, log_dt, D_skip):
        L = u.shape[1]
        dt = torch.exp(log_dt)
        A = -torch.exp(log_A_real) + 1j * A_imag
        C = (C_real + 1j * C_imag) * dt[:, None]
        pos = (lambda x, dt: x.to(dt))(torch.arange(L), log_dt.dtype)
        P = torch.exp((A * dt[:, None])[:, :, None] * pos[None, None, :])
        K = 2.0 * torch.einsum("dn,dnl->dl", C, P).real
        L2 = 2 * L
        u_t = (lambda x, *d: x.permute(*d))(u, 0, 2, 1)
        Kf = (lambda x, *a, **k: torch.fft.rfft(x.float(), *a, **k))(K, L2)
        Uf = (lambda x, *a, **k: torch.fft.rfft(x.float(), *a, **k))(u_t, L2)
        y = (lambda x, *a, **k: torch.fft.irfft(x, *a, **k).to(torch.bfloat16))(Uf * Kf[None, :, :], L2)[:, :, :L]
        y = (lambda x, *d: x.permute(*d))(y, 0, 2, 1)
        return y + u * D_skip[None, None, :]

    def _B_ref(x, w_gate, w_up, w_down):
        return (_gelu(x @ w_gate) * (x @ w_up)) @ w_down

    x = A_u
    g = _sigmoid((x * gate_w).sum(-1, keepdims=True))
    a = _A_ref(x, A_log_A_real, A_A_imag, A_C_real, A_C_imag, A_log_dt, A_D_skip)
    b = _B_ref(x, B_w_gate, B_w_up, B_w_down)
    return g * a + (1 - g) * b
```

```python
import re

TRANS = ('v_exp_f32','v_log_f32','v_rcp_f32','v_rsq_f32','v_sqrt_f32','v_sin_f32','v_cos_f32')

def regs_of(tok):
    tok = tok.strip()
    tok = tok.replace('-','').replace('|','')
    if tok.startswith('abs(') : tok = tok[4:-1]
    m = re.fullmatch(r'([vsa])(\d+)', tok)
    if m: return [(m.group(1), int(m.group(2)))]
    m = re.fullmatch(r'([vsa])\[(\d+):(\d+)\]', tok)
    if m: return [(m.group(1), i) for i in range(int(m.group(2)), int(m.group(3))+1)]
    if tok == 'vcc': return [('s', 106), ('s', 107)]
    if tok == 'exec': return [('s', 126), ('s', 127)]
    if tok == 'm0': return [('s', 124)]
    return []

class Ins:
    def __init__(self, text):
        self.text = text
        t = text.split(';')[0].strip()
        self.is_label = t.endswith(':')
        self.is_dir = t.startswith('.')
        self.op = t.split()[0] if t and not self.is_label else ''
        rest = t[len(self.op):].strip() if self.op else ''
        ops = [o.strip() for o in rest.split(',')] if rest else []
        cleaned = []
        for o in ops:
            parts = o.split()
            cleaned.append(parts[0] if parts else '')
        self.ops = cleaned
        self.full = rest
        self.classify()
    def classify(self):
        op = self.op
        self.w = []; self.r = []
        self.valu = op.startswith('v_') and not op.startswith('v_mfma')
        self.mfma = op.startswith('v_mfma')
        self.trans = any(op.startswith(x) for x in TRANS)
        self.vmem = op.startswith('buffer_') or op.startswith('global_')
        self.ds = op.startswith('ds_')
        self.salu = op.startswith('s_')
        o = self.ops
        R = lambda i: regs_of(o[i]) if i < len(o) else []
        if self.mfma:
            self.w = R(0); self.r = R(1)+R(2)+R(3)
            self.srcc = R(3)
            self.passes = 8 if '32x32x16' in op else 4
        elif self.valu:
            self.w = R(0)
            for i in range(1, len(o)): self.r += R(i)
            if op.startswith('v_fmac') or op.startswith('v_permlane') : self.r += R(0)
            if op.startswith('v_permlane'): self.w += R(1)
            if op.startswith('v_cndmask') and len(o) == 3: self.r += regs_of('vcc')
            if op.startswith('v_cmp') and '_e32' in op: pass
        elif self.ds:
            if op.startswith('ds_read') or op.startswith('ds_swizzle') or op.startswith('ds_bpermute'):
                self.w = R(0)
                for i in range(1, len(o)): self.r += R(i)
                if 'd16' in op: self.r += R(0)
            else:
                for i in range(len(o)): self.r += R(i)
        elif self.vmem:
            lds = ' lds' in (' ' + self.full)
            if 'store' in op or lds:
                for i in range(len(o)): self.r += R(i)
            else:
                self.w = R(0)
                for i in range(1, len(o)): self.r += R(i)
                if 'd16' in op: self.r += R(0)
            self.ldsdma = lds
            if lds: self.r += regs_of('m0')
        elif self.salu:
            if op in ('s_nop','s_waitcnt','s_barrier','s_endpgm','s_branch','s_setprio') or op.startswith('s_cbranch') or op.startswith('s_cmp'):
                pass
            else:
                self.w = R(0)
                for i in range(1, len(o)): self.r += R(i)
                if 'saveexec' in op: self.w += regs_of('exec')
    def slots(self):
        if self.op == 's_nop': return int(self.ops[0]) + 1
        if self.is_label or self.is_dir or not self.op: return 0
        return 1

def hazard_pass(lines):
    out = []
    hist = []
    def need(ins):
        req = 0
        dist = 0
        for prev in reversed(hist):
            n = 0
            pw = set(prev.w);
            if prev.valu and pw:
                rd = pw & set(ins.r)
                vrd = [x for x in rd if x[0] == 'v']
                srd = [x for x in rd if x[0] == 's']
                if vrd:
                    if prev.trans and (ins.valu or ins.mfma) : n = max(n, 1)
                    if ins.mfma: n = max(n, 2)
                    if ins.op.startswith('v_readlane') or ins.op.startswith('v_readfirstlane'): n = max(n, 1)
                    if ins.op.startswith('v_permlane'): n = max(n, 2)
                    if 'dpp' in ins.text or 'row_' in ins.text: n = max(n, 2)
                if srd:
                    if ins.valu: n = max(n, 2)
                    if ins.vmem: n = max(n, 5)
                    if ins.op.startswith('v_readlane') : n = max(n, 4)
                    if ins.salu: n = max(n, 1)
            if prev.mfma:
                touch = pw & (set(ins.r) | set(ins.w))
                if touch:
                    same_acc = ins.mfma and set(ins.srcc) == pw and set(ins.w) == pw and not (pw & (set(regs_of(ins.ops[1])) | set(regs_of(ins.ops[2])))) and ins.passes == prev.passes
                    if not same_acc:
                        n = max(n, 12 if prev.passes == 8 else 8)
                if ins.valu and (set(prev.srcc) & set(ins.w)):
                    n = max(n, 7 if prev.passes == 8 else 3)
            if prev.vmem and 'store' in prev.op and ('x4' in prev.op or 'x3' in prev.op):
                if (ins.valu or ins.mfma) and (set(regs_of(prev.ops[0])) & set(ins.w)): n = max(n, 2)
                elif set(regs_of(prev.ops[0])) & set(ins.w): n = max(n, 1)
            if prev.salu and ('s', 124) in prev.w and ins.vmem and getattr(ins, 'ldsdma', False):
                n = max(n, 1)
            if n > dist: req = max(req, n - dist)
            dist += prev.slots()
            if dist > 20: break
        return req
    for line in lines:
        ins = Ins(line)
        if ins.is_label or ins.is_dir or not ins.op:
            if ins.is_label:
                pass
            out.append(line); continue
        k = need(ins)
        while k > 0:
            c = min(k, 16)
            nop = Ins('s_nop %d' % (c-1)); out.append('    s_nop %d' % (c-1)); hist.append(nop); k -= c
        out.append(line); hist.append(ins)
        if len(hist) > 64: hist = hist[-48:]
    return out

class Asm:
    def __init__(self): self.l = []
    def __call__(self, s):
        for x in s.strip('\n').split('\n'):
            x = x.rstrip()
            if x.strip(): self.l.append(('    ' + x.strip()) if not x.strip().endswith(':') else x.strip())
    def label(self, n): self.l.append(n + ':')
    def text(self): return '\n'.join(hazard_pass(self.l)) + '\n'
```

```python
import sys
from asmlib import Asm

HDR = open('gated_mix__ssm_conv_s4d__geglu_ffn__prompt.s.ref').read().split('; Override launch')[0]

WS_HF = 0
HF_BYTES = 64*43*2048
WS_WD = 0x600000
WD_BYTES = 16*43*2048
WS_A = 0x800000
A_BYTES = 2048*512*2
WS_G = 0xA00000
G_BYTES = 2048*4

N_CONV = 64
N_G1 = 176
N_AUX = 16
K1_GRID = N_CONV + N_G1 + N_AUX
K1_LDS = 131072
K2_LDS = 65536

LOG2E = 1.4426950408889634
import struct
def f2u(x): return '0x%08x' % struct.unpack('<I', struct.pack('<f', x))[0]

def srd(a, s, lo, hi, size, off=0):
    if off:
        a(f's_add_u32 s{s}, s{lo}, {off}\ns_addc_u32 s{s+1}, s{hi}, 0')
    else:
        a(f's_mov_b32 s{s}, s{lo}\ns_mov_b32 s{s+1}, s{hi}')
    a(f's_and_b32 s{s+1}, s{s+1}, 0xffff\ns_mov_b32 s{s+2}, {size}\ns_mov_b32 s{s+3}, 0x00020000')

def load_ptrs(a):
    a('''s_load_dwordx16 s[16:31], s[0:1], 0
s_load_dwordx8 s[32:39], s[0:1], 64
s_load_dwordx4 s[40:43], s[0:1], 96
s_load_dwordx2 s[44:45], s[0:1], 112
v_and_b32 v1, 63, v0
v_lshrrev_b32 v2, 6, v0
s_nop 0
v_readfirstlane_b32 s49, v2
s_waitcnt lgkmcnt(0)''')

def bf16_round_pair(a, dpk, x0, x1):
    a(f'v_cvt_pk_bf16_f32 v{dpk}, v{x0}, v{x1}')

def gemm1(a):
    a('G1:')
    a(f's_sub_u32 s46, s2, {N_CONV}\ns_and_b32 s47, s46, 7\ns_lshr_b32 s48, s46, 3')
    srd(a, 52, 16, 17, 2097152)
    srd(a, 56, 32, 33, 1409024)
    srd(a, 60, 34, 35, 1409024)
    srd(a, 64, 44, 45, HF_BYTES, WS_HF)
    a('''s_lshl_b32 s50, s47, 8
s_lshl_b32 s51, s49, 5
s_add_u32 s50, s50, s51
v_and_b32 v2, 31, v1
v_add_u32 v2, s50, v2
v_lshlrev_b32 v2, 10, v2
v_lshrrev_b32 v3, 5, v1
v_lshlrev_b32 v3, 6, v3
v_add_u32 v2, v2, v3''')
    a('''v_lshrrev_b32 v4, 3, v1
s_lshl_b32 s50, s49, 3
v_add_u32 v4, s50, v4
s_movk_i32 s51, 2752
v_mul_lo_u32 v3, v4, s51
v_lshrrev_b32 v4, 4, v1
v_and_b32 v4, 1, v4
v_lshlrev_b32 v4, 2, v4
v_and_b32 v5, 7, v1
v_xor_b32 v4, v4, v5
v_lshlrev_b32 v4, 4, v4
v_add_u32 v3, v3, v4
s_lshl_b32 s50, s48, 7
v_add_u32 v3, s50, v3''')
    a('''v_and_b32 v8, 15, v1
v_lshrrev_b32 v9, 5, v1
v_lshlrev_b32 v9, 5, v9
v_lshrrev_b32 v10, 2, v8
v_add_u32 v9, v9, v10
v_lshlrev_b32 v9, 7, v9
v_lshrrev_b32 v10, 4, v1
v_and_b32 v10, 1, v10
v_lshlrev_b32 v10, 1, v10
v_and_b32 v11, 3, v8
v_lshrrev_b32 v11, 1, v11
v_add_u32 v10, v10, v11
v_lshrrev_b32 v11, 3, v8
v_lshlrev_b32 v11, 2, v11
v_xor_b32 v10, v10, v11
v_lshlrev_b32 v10, 4, v10
v_add_u32 v9, v9, v10
v_and_b32 v10, 1, v8
v_lshlrev_b32 v10, 3, v10
v_add_u32 v4, v9, v10
v_xor_b32 v5, 64, v4
v_add_u32 v6, 0x10000, v4
v_add_u32 v7, 0x10000, v5''')
    XB = 64
    ACC = {('g',0):192, ('g',1):208, ('u',0):224, ('u',1):240}
    for r in range(192, 256): a(f'v_mov_b32 v{r}, 0')
    a('s_lshl_b32 s51, s49, 10')
    for S in range(8):
        for t in range(4):
            r = XB + 16*S + 4*t
            a(f'buffer_load_dwordx4 v[{r}:{r+3}], v2, s[52:55], 0 offen offset:{128*S+16*t}')
        a(f's_mov_b32 s50, {176128*S}')
        a(f's_add_u32 s68, s51, {8192*S}\ns_mov_b32 m0, s68')
        a(f'buffer_load_dwordx4 v3, s[56:59], s50 offen lds')
        a(f's_add_u32 s68, s51, {65536+8192*S}\ns_mov_b32 m0, s68')
        a(f'buffer_load_dwordx4 v3, s[60:63], s50 offen lds')
    FR = [8, 24]
    def reads(S, t, fs):
        for i, base in enumerate([4, 5, 6, 7]):
            for u in range(2):
                r = FR[fs] + 4*i + 2*u
                a(f'ds_read_b64_tr_b16 v[{r}:{r+1}], v{base} offset:{8192*S + (8*t+4*u)*128}')
    def mfmas(S, t, fs):
        xb = XB + 16*S + 4*t
        for i, key in enumerate([('g',0),('g',1),('u',0),('u',1)]):
            r = FR[fs] + 4*i; c = ACC[key]
            a(f'v_mfma_f32_32x32x16_bf16 v[{c}:{c+15}], v[{r}:{r+3}], v[{xb}:{xb+3}], v[{c}:{c+15}]')
    for S in range(8):
        a(f's_waitcnt vmcnt({6*(7-S)})\ns_barrier')
        reads(S, 0, 0)
        for t in range(4):
            a('s_waitcnt lgkmcnt(0)')
            if t < 3: reads(S, t+1, (t+1) & 1)
            mfmas(S, t, t & 1)
    C1 = f2u(-2*0.7978845608028654*LOG2E)
    a(f's_mov_b32 s70, {C1}\ns_mov_b32 s71, {f2u(0.044715)}')
    a('''s_lshl_b32 s50, s47, 3
s_add_u32 s50, s50, s49
s_mul_i32 s50, s50, 43
s_lshl_b32 s51, s48, 1
s_add_u32 s50, s50, s51
s_lshl_b32 s50, s50, 11
v_lshlrev_b32 v2, 4, v1''')
    for ft in range(2):
        if ft == 1:
            a('s_cmp_eq_u32 s48, 21\ns_cbranch_scc1 G1_DONE')
        g0 = ACC[('g',ft)]; u0 = ACC[('u',ft)]
        for i in range(0, 16, 2):
            a(f'''v_cvt_pk_bf16_f32 v8, v{g0+i}, v{g0+i+1}
v_cvt_pk_bf16_f32 v9, v{u0+i}, v{u0+i+1}
v_lshlrev_b32 v10, 16, v8
v_and_b32 v11, 0xffff0000, v8
v_lshlrev_b32 v12, 16, v9
v_and_b32 v13, 0xffff0000, v9''')
            for x, tt in ((10, 14), (11, 15)):
                a(f'''v_mul_f32 v{tt}, v{x}, v{x}
v_fma_f32 v{tt}, v{tt}, s71, 1.0
v_mul_f32 v{tt}, v{tt}, v{x}
v_mul_f32 v{tt}, s70, v{tt}
v_exp_f32 v{tt}, v{tt}
v_add_f32 v{tt}, 1.0, v{tt}
v_rcp_f32 v{tt}, v{tt}
v_mul_f32 v{tt}, v{tt}, v{x}''')
            a(f'''v_cvt_pk_bf16_f32 v8, v14, v15
v_lshlrev_b32 v14, 16, v8
v_and_b32 v15, 0xffff0000, v8
v_mul_f32 v14, v14, v12
v_mul_f32 v15, v15, v13
v_cvt_pk_bf16_f32 v{40 + i//2}, v14, v15''')
        for t in range(2):
            a(f'buffer_store_dwordx4 v[{40+4*t}:{43+4*t}], v2, s[64:67], s50 offen offset:{2048*ft + 1024*t}')
    a('G1_DONE:\ns_endpgm')

def swz_reduce(a, op, v, tmp):
    for m in (1, 2, 4, 8, 16):
        a(f'ds_swizzle_b32 v{tmp}, v{v} offset:{(m << 10) | 0x1f}\ns_waitcnt lgkmcnt(0)\n{op} v{v}, v{v}, v{tmp}')

def aux(a):
    a('AUX:')
    a(f's_sub_u32 s46, s2, {N_CONV+N_G1}\ns_lshl_b32 s46, s46, 3\ns_add_u32 s46, s46, s49')
    srd(a, 52, 36, 37, 1409024)
    srd(a, 56, 44, 45, WD_BYTES, WS_WD)
    srd(a, 60, 16, 17, 2097152)
    srd(a, 64, 38, 39, 1024)
    srd(a, 68, 44, 45, G_BYTES, WS_G)
    a('''v_and_b32 v2, 31, v1
v_lshlrev_b32 v2, 1, v2
v_lshrrev_b32 v3, 5, v1
v_lshlrev_b32 v3, 12, v3
v_add_u32 v2, v2, v3
v_lshlrev_b32 v3, 4, v1
s_mov_b32 s47, s46
AUX_WD:
s_cmp_ge_u32 s47, 688
s_cbranch_scc1 AUX_G
s_and_b32 s48, s47, 15
s_lshr_b32 s50, s47, 4
s_lshl_b32 s51, s50, 15
s_lshl_b32 s72, s48, 6
s_add_u32 s51, s51, s72''')
    for t in range(2):
        for hi in range(2):
            a(f's_add_u32 s72, s51, {(16*t+8*hi)*1024}')
            for e in range(4):
                r = 8 + 4*t + 2*hi + e//2 + (16 if e % 2 else 0)
                a(f'buffer_load_ushort v{r}, v2, s[52:55], s72 offen offset:{1024*e}')
    a('''s_mul_i32 s72, s48, 43
s_add_u32 s72, s72, s50
s_lshl_b32 s72, s72, 11
s_waitcnt vmcnt(0)
v_lshl_or_b32 v8, v24, 16, v8
v_lshl_or_b32 v9, v25, 16, v9
v_lshl_or_b32 v10, v26, 16, v10
v_lshl_or_b32 v11, v27, 16, v11
v_lshl_or_b32 v12, v28, 16, v12
v_lshl_or_b32 v13, v29, 16, v13
v_lshl_or_b32 v14, v30, 16, v14
v_lshl_or_b32 v15, v31, 16, v15
buffer_store_dwordx4 v[8:11], v3, s[56:59], s72 offen
buffer_store_dwordx4 v[12:15], v3, s[56:59], s72 offen offset:1024
s_add_u32 s47, s47, 128
s_waitcnt vmcnt(0)
s_branch AUX_WD
AUX_G:
buffer_load_dwordx4 v[16:19], v3, s[64:67], 0 offen
s_mov_b32 s47, s46
AUX_G1:
s_lshl_b32 s48, s47, 10
buffer_load_dwordx4 v[8:11], v3, s[60:63], s48 offen
s_waitcnt vmcnt(0)
v_mov_b32 v20, 0''')
    for i in range(4):
        a(f'''v_lshlrev_b32 v12, 16, v{8+i}
v_and_b32 v13, 0xffff0000, v{8+i}
v_lshlrev_b32 v14, 16, v{16+i}
v_and_b32 v15, 0xffff0000, v{16+i}
v_mul_f32 v12, v12, v14
v_mul_f32 v13, v13, v15
v_cvt_pk_bf16_f32 v12, v12, v13
v_lshlrev_b32 v13, 16, v12
v_and_b32 v12, 0xffff0000, v12
v_add_f32 v20, v20, v13
v_add_f32 v20, v20, v12''')
    swz_reduce(a, 'v_add_f32', 20, 21)
    a(f'''v_readlane_b32 s50, v20, 0
v_readlane_b32 s51, v20, 32
v_mov_b32 v20, s50
v_add_f32 v20, s51, v20
v_cvt_pk_bf16_f32 v20, v20, v20
v_lshlrev_b32 v20, 16, v20
v_mul_f32 v20, {f2u(-LOG2E)}, v20
v_exp_f32 v20, v20
v_add_f32 v20, 1.0, v20
v_rcp_f32 v20, v20
v_cvt_pk_bf16_f32 v20, v20, v20
v_lshlrev_b32 v20, 16, v20
s_lshl_b32 s48, s47, 2
v_mov_b32 v21, s48
v_cmp_eq_u32 vcc, 0, v1
s_and_saveexec_b64 s[74:75], vcc
buffer_store_dword v20, v21, s[68:71], 0 offen
s_mov_b64 exec, s[74:75]
s_add_u32 s47, s47, 128
s_cmp_lt_u32 s47, 2048
s_cbranch_scc1 AUX_G1
s_endpgm''')

UT_CH = 7680
PB0 = 61440; PB_CH = 2688
KB0 = PB0 + 8*PB_CH; KB_CH = 4224

def conv(a):
    a('CONV:')
    a('s_lshl_b32 s46, s2, 3\ns_add_u32 s47, s46, s49')
    srd(a, 52, 16, 17, 2097152)
    srd(a, 56, 18, 19, 131072)
    srd(a, 60, 20, 21, 131072)
    srd(a, 64, 22, 23, 131072)
    srd(a, 68, 24, 25, 131072)
    srd(a, 72, 44, 45, A_BYTES, WS_A)
    a('''s_lshr_b32 s48, s47, 1
s_lshl_b32 s48, s48, 2
s_add_u32 s76, s26, s48
s_addc_u32 s77, s27, 0
s_add_u32 s78, s28, s48
s_addc_u32 s79, s29, 0
s_load_dword s80, s[76:77], 0
s_load_dword s81, s[78:79], 0''')
    a('''v_lshlrev_b32 v2, 10, v0
s_lshl_b32 s48, s46, 1
v_add_u32 v2, s48, v2''')
    for i in range(4):
        a(f's_mov_b32 s48, {i*512*1024}\nbuffer_load_dwordx4 v[{8+4*i}:{11+4*i}], v2, s[52:55], s48 offen')
    a('''s_lshl_b32 s48, s47, 8
v_lshlrev_b32 v3, 2, v1
v_add_u32 v3, s48, v3
buffer_load_dword v24, v3, s[56:59], 0 offen
buffer_load_dword v25, v3, s[60:63], 0 offen
buffer_load_dword v26, v3, s[64:67], 0 offen
buffer_load_dword v27, v3, s[68:71], 0 offen''')
    a(f'''s_mul_i32 s50, s49, {UT_CH}
v_lshlrev_b32 v4, 4, v1
v_add_u32 v4, s50, v4
v_mov_b32 v28, 0
v_mov_b32 v29, 0
v_mov_b32 v30, 0
v_mov_b32 v31, 0
ds_write_b128 v4, v[28:31]
ds_write_b128 v4, v[28:31] offset:1024
v_cmp_gt_u32 vcc, 32, v1
s_and_saveexec_b64 s[82:83], vcc
ds_write_b128 v4, v[28:31] offset:2048
s_mov_b64 exec, s[82:83]''')
    a('''v_lshrrev_b32 v5, 5, v0
v_add_u32 v5, 32, v5
v_mul_u32_u24 v5, 80, v5
v_and_b32 v6, 31, v0
v_lshlrev_b32 v6, 1, v6
v_add_u32 v5, v5, v6
s_waitcnt vmcnt(4)''')
    for i in range(4):
        for c in range(8):
            r = 8 + 4*i + c//2
            opn = 'ds_write_b16' if c % 2 == 0 else 'ds_write_b16_d16_hi'
            a(f'{opn} v5, v{r} offset:{c*UT_CH + i*16*80}')
    a(f'''s_waitcnt vmcnt(0) lgkmcnt(0)
s_bitcmp1_b32 s47, 0
s_cselect_b32 s48, 0, 16
s_lshl_b32 s80, s80, s48
s_and_b32 s80, s80, 0xffff0000
s_lshl_b32 s81, s81, s48
s_and_b32 s81, s81, 0xffff0000
v_mov_b32 v28, s80
v_mul_f32 v28, {f2u(LOG2E)}, v28
v_exp_f32 v28, v28
v_cvt_pk_bf16_f32 v28, v28, v28
v_lshlrev_b32 v28, 16, v28''')
    a('''v_lshlrev_b32 v32, 16, v24
v_and_b32 v33, 0xffff0000, v24
v_lshlrev_b32 v34, 16, v25
v_and_b32 v35, 0xffff0000, v25
v_lshlrev_b32 v36, 16, v26
v_and_b32 v37, 0xffff0000, v26
v_lshlrev_b32 v38, 16, v27
v_and_b32 v39, 0xffff0000, v27
v_max3_f32 v40, |v36|, |v37|, |v38|
v_max_f32 v40, |v39|, v40''')
    swz_reduce(a, 'v_max_f32', 40, 41)
    a(f'''v_readlane_b32 s50, v40, 0
v_readlane_b32 s51, v40, 32
v_mov_b32 v40, s50
v_max_f32 v40, s51, v40
v_cmp_eq_f32 vcc, 0, v40
v_cndmask_b32 v40, v40, 1.0, vcc
v_rcp_f32 v41, v40
v_mul_f32 v42, v40, v28
v_add_f32 v42, v42, v42''')
    for k in range(2):
        la, ai, cr, ci = 32+k, 34+k, 36+k, 38+k
        o = 44 + 4*k
        a(f'''v_mul_f32 v{la}, {f2u(LOG2E)}, v{la}
v_exp_f32 v{la}, v{la}
v_cvt_pk_bf16_f32 v{la}, v{la}, v{la}
v_lshlrev_b32 v{la}, 16, v{la}
v_mul_f32 v{la}, v{la}, v28
v_mul_f32 v{o}, {f2u(-LOG2E)}, v{la}
v_mul_f32 v{ai}, v{ai}, v28
v_mul_f32 v{o+1}, {f2u(1/(2*3.141592653589793))}, v{ai}
v_mul_f32 v{o+2}, v{cr}, v41
v_mul_f32 v{o+3}, v{ci}, v41''')
    a(f'''s_mul_i32 s50, s49, {PB_CH}
s_add_u32 s50, s50, {PB0}
v_lshlrev_b32 v4, 5, v1
v_add_u32 v4, s50, v4
ds_write_b128 v4, v[44:47]
ds_write_b128 v4, v[48:51] offset:16
v_lshrrev_b32 v4, 4, v1
v_lshlrev_b32 v4, 6, v4
v_add_u32 v4, s50, v4
v_and_b32 v5, 15, v1
v_cvt_f32_u32 v6, v5
v_cmp_eq_u32 s[84:85], 0, v5
v_lshlrev_b32 v7, 4, v5
v_mov_b32 v5, 0x100
v_cndmask_b32 v7, v7, v5, s[84:85]
v_cvt_f32_u32 v7, v7''')
    KACC = [192, 196, 200, 204]
    for r in range(192, 208): a(f'v_mov_b32 v{r}, 0')
    a('s_waitcnt lgkmcnt(0)')
    YP = [64, 68, 72, 76]
    XP = [80, 84, 88, 92]
    for tau in range(8):
        for c in range(4):
            a(f'ds_read_b128 v[{48+4*c}:{51+4*c}], v4 offset:{256*tau+16*c}')
        a('s_waitcnt lgkmcnt(0)')
        for c in range(4):
            zr, zi, cr, ci = 48+4*c, 49+4*c, 50+4*c, 51+4*c
            a(f'''v_mul_f32 v12, v{zr}, v6
v_mul_f32 v13, v{zi}, v6
v_mul_f32 v14, v{zr}, v7
v_mul_f32 v15, v{zi}, v7
v_exp_f32 v12, v12
v_fract_f32 v13, v13
v_exp_f32 v14, v14
v_fract_f32 v15, v15
v_cos_f32 v8, v13
v_sin_f32 v9, v13
v_cos_f32 v10, v15
v_sin_f32 v11, v15
v_mul_f32 v8, v8, v12
v_mul_f32 v9, v9, v12
v_mul_f32 v10, v10, v14
v_mul_f32 v11, v11, v14
v_cndmask_b32 v16, v10, 1.0, s[84:85]
v_cndmask_b32 v17, v11, 0, s[84:85]''')
            for si in range(4):
                er, ei = (16, 17) if si == 0 else (10, 11)
                a(f'''v_cvt_pk_f16_f32 v{YP[si]+c}, v8, v9
v_mul_f32 v18, v{cr}, v{er}
v_mul_f32 v19, v{cr}, v{ei}
v_fma_f32 v18, -v{ci}, v{ei}, v18
v_fma_f32 v19, -v{ci}, v{er}, -v19
v_cvt_pk_f16_f32 v{XP[si]+c}, v18, v19''')
                if si < 3:
                    a('''v_mul_f32 v12, v9, v9
v_mul_f32 v13, v8, v9
v_fma_f32 v8, v8, v8, -v12
v_add_f32 v9, v13, v13
v_mul_f32 v12, v11, v11
v_mul_f32 v13, v10, v11
v_fma_f32 v10, v10, v10, -v12
v_add_f32 v11, v13, v13''')
        for si in range(4):
            k = KACC[si]
            a(f'v_mfma_f32_16x16x32_f16 v[{k}:{k+3}], v[{XP[si]}:{XP[si]+3}], v[{YP[si]}:{YP[si]+3}], v[{k}:{k+3}]')
    a(f'''v_lshrrev_b32 v4, 4, v1
v_lshlrev_b32 v4, 6, v4
v_and_b32 v5, 15, v1
v_add_u32 v4, v4, v5
v_lshlrev_b32 v4, 2, v4
v_add_u32 v4, s50, v4
v_cmp_le_u32 s[82:83], 32, v1
v_cmp_eq_u32 s[86:87], 0, v1
v_mov_b32 v8, s50
v_add_u32 v8, {640*4 - 384*4}, v8
v_cndmask_b32 v8, v4, v8, s[86:87]
s_or_b64 s[86:87], s[86:87], s[82:83]
v_mov_b32 v9, 0
v_mov_b32 v10, s50''')
    a(f'ds_write_b32 v10, v9 offset:{650*4}')
    for si in range(4):
        for i in range(4):
            r = KACC[si] + i
            a(f'v_mul_f32 v{r}, v{r}, v42')
    for si in range(4):
        base = [0, 128, 256, 384][si]
        for i in range(4):
            r = KACC[si] + i
            if si == 1 and i == 0: a('s_mov_b64 exec, s[82:83]')
            if si == 3 and i == 0: a('s_mov_b64 exec, s[86:87]')
            if si == 3 and i == 1: a('s_mov_b64 exec, s[82:83]')
            ad = 8 if (si == 3 and i == 0) else 4
            a(f'ds_write_b32 v{ad}, v{r} offset:{(base + 16*i)*4}')
    a('s_mov_b64 exec, -1')
    a(f'''s_mul_i32 s51, s49, {KB_CH}
s_add_u32 s51, s51, {KB0}
v_lshlrev_b32 v4, 2, v1
v_add_u32 v4, s51, v4
v_lshlrev_b32 v5, 1, v1
v_sub_u32 v5, 2047, v5
s_movk_i32 s48, {0x4300-128}
v_mov_b32 v13, 650''')
    for it in range(17):
        if it == 16:
            a('v_cmp_gt_u32 vcc, 16, v1\ns_and_saveexec_b64 s[82:83], vcc')
        for k in range(2):
            lg = 8 + k; ix = 10 + k
            a(f'''v_subrev_u32 v{lg}, {128*it + k}, v5
v_cvt_f32_i32 v12, v{lg}
v_cvt_pk_bf16_f32 v12, v12, v12
v_and_b32 v12, 0xffff, v12
v_subrev_u32 v12, s48, v12
v_cmp_gt_i32 vcc, 128, v{lg}
v_cndmask_b32 v{ix}, v12, v{lg}, vcc
v_cmp_gt_i32 vcc, 0, v{lg}
v_cndmask_b32 v{ix}, v{ix}, v13, vcc
v_lshlrev_b32 v{ix}, 2, v{ix}
v_add_u32 v{ix}, s50, v{ix}
ds_read_b32 v{12+2+k}, v{ix}''')
        a(f'''s_waitcnt lgkmcnt(0)
v_cvt_pk_bf16_f32 v14, v14, v15
ds_write_b32 v4, v14 offset:{256*it}''')
        if it == 16:
            a('s_mov_b64 exec, s[82:83]')
    a(f'''s_waitcnt lgkmcnt(0)
s_barrier
v_and_b32 v8, 31, v1
v_lshrrev_b32 v9, 5, v1
v_lshlrev_b32 v10, 3, v9
v_sub_u32 v10, v10, v8
v_add_u32 v10, {2047 - 32*63}, v10
v_lshlrev_b32 v10, 1, v10
v_add_u32 v4, s51, v10
s_mul_i32 s48, s49, {UT_CH}
v_mul_u32_u24 v10, 80, v8
v_lshlrev_b32 v11, 4, v9
v_add_u32 v10, v10, v11
v_add_u32 v10, {64*80 - 80*31 - 2560}, v10
v_add_u32 v5, s48, v10''')
    A0, A1 = 192, 208
    for r in range(192, 224): a(f'v_mov_b32 v{r}, 0')
    FS = [64, 80]
    steps = [(d, h) for d in range(32) for h in range(2)]
    def rd(k):
        d, h = steps[k]; f = FS[k & 1]
        a(f'''ds_read_b128 v[{f}:{f+3}], v4 offset:{64*(63-d)+32*h}
ds_read_b128 v[{f+4}:{f+7}], v4 offset:{64*(63-d-32)+32*h}
ds_read_b128 v[{f+8}:{f+11}], v5 offset:{80*(31-d)+32*h}
ds_read_b128 v[{f+12}:{f+15}], v5 offset:{80*(31-d)+2560+32*h}''')
    rd(0)
    for k in range(64):
        a('s_waitcnt lgkmcnt(0)')
        if k < 63: rd(k+1)
        f = FS[k & 1]
        a(f'''v_mfma_f32_32x32x16_bf16 v[{A0}:{A0+15}], v[{f}:{f+3}], v[{f+8}:{f+11}], v[{A0}:{A0+15}]
v_mfma_f32_32x32x16_bf16 v[{A1}:{A1+15}], v[{f}:{f+3}], v[{f+12}:{f+15}], v[{A1}:{A1+15}]
v_mfma_f32_32x32x16_bf16 v[{A1}:{A1+15}], v[{f+4}:{f+7}], v[{f+8}:{f+11}], v[{A1}:{A1+15}]''')
    a(f'''v_and_b32 v8, 31, v1
v_lshrrev_b32 v9, 5, v1
v_mul_u32_u24 v10, 80, v8
v_lshlrev_b32 v11, 3, v9
v_add_u32 v10, v10, v11
v_add_u32 v4, s48, v10
v_mov_b32 v6, s81''')
    for t in range(2):
        for q in range(4):
            a(f'ds_read_b64 v[{64+8*t+2*q}:{65+8*t+2*q}], v4 offset:{(32+32*t)*80 + 16*q}')
    a('s_waitcnt lgkmcnt(0)')
    for t in range(2):
        acc = A0 if t == 0 else A1
        for q in range(4):
            ur = 64 + 8*t + 2*q
            for p in range(2):
                y0, y1 = acc + 4*q + 2*p, acc + 4*q + 2*p + 1
                a(f'''v_lshlrev_b32 v8, 16, v{ur+p}
v_and_b32 v9, 0xffff0000, v{ur+p}
v_mul_f32 v8, v8, v6
v_mul_f32 v9, v9, v6
v_cvt_pk_bf16_f32 v8, v8, v9
v_cvt_pk_bf16_f32 v10, v{y0}, v{y1}
v_lshlrev_b32 v9, 16, v8
v_and_b32 v8, 0xffff0000, v8
v_lshlrev_b32 v11, 16, v10
v_and_b32 v10, 0xffff0000, v10
v_add_f32 v9, v9, v11
v_add_f32 v8, v8, v10
v_cvt_pk_bf16_f32 v{ur+p}, v9, v8''')
            a(f'ds_write_b64 v4, v[{ur}:{ur+1}] offset:{(32+32*t)*80 + 16*q}')
    a('''s_waitcnt lgkmcnt(0)
s_barrier
v_lshrrev_b32 v5, 5, v0
v_add_u32 v5, 32, v5
v_mul_u32_u24 v5, 80, v5
v_and_b32 v6, 31, v0
v_lshlrev_b32 v6, 1, v6
v_add_u32 v5, v5, v6''')
    for i in range(4):
        for c in range(8):
            r = 8 + 4*i + c//2 + (32 if c % 2 else 0)
            a(f'ds_read_u16 v{r}, v5 offset:{c*UT_CH + i*16*80}')
        a('s_waitcnt lgkmcnt(0)')
        for c in range(4):
            r = 8 + 4*i + c
            a(f'v_lshl_or_b32 v{r}, v{r+32}, 16, v{r}')
        a(f's_mov_b32 s48, {i*512*1024}\nbuffer_store_dwordx4 v[{8+4*i}:{11+4*i}], v2, s[72:75], s48 offen')
    a('s_endpgm')

def kernel1(a):
    a('.p2align 8')
    a.l.append('k1_kernel:')
    a(f's_cmp_ge_u32 s2, {K1_GRID}\ns_cbranch_scc1 K1_EXIT')
    load_ptrs(a)
    a(f's_cmp_lt_u32 s2, {N_CONV}\ns_cbranch_scc1 CONV_J')
    a(f's_cmp_lt_u32 s2, {N_CONV+N_G1}\ns_cbranch_scc1 G1')
    a('s_branch AUX')
    a('CONV_J:\ns_branch CONV')
    a('K1_EXIT:\ns_endpgm')
    gemm1(a); aux(a); conv(a)

def kernel2(a):
    a('.p2align 8')
    a.l.append('k2_kernel:')
    a('s_cmp_ge_u32 s2, 256\ns_cbranch_scc1 K2_EXIT')
    load_ptrs(a)
    a('s_and_b32 s46, s2, 7\ns_lshr_b32 s47, s2, 3')
    srd(a, 52, 44, 45, HF_BYTES, WS_HF)
    srd(a, 56, 44, 45, WD_BYTES, WS_WD)
    srd(a, 60, 44, 45, A_BYTES, WS_A)
    srd(a, 64, 44, 45, G_BYTES, WS_G)
    srd(a, 68, 40, 41, A_BYTES)
    a('v_lshlrev_b32 v2, 4, v1')
    a(f'''s_mul_i32 s72, s46, {2*43*2048}
s_add_u32 s73, s72, {43*2048}
s_mul_i32 s74, s47, {2*43*2048}
s_add_u32 s75, s74, {43*2048}''')
    ACC = [192, 208, 224, 240]
    for r in range(192, 256): a(f'v_mov_b32 v{r}, 0')
    SETS = [8, 40, 72]
    NB = 11
    def loads(i):
        st = SETS[i % 3]
        a(f'''s_add_u32 s76, s49, {4*i}
s_min_u32 s76, s76, 42
s_lshl_b32 s76, s76, 11''')
        for j in range(2):
            a(f's_add_u32 s77, s76, s{72+j}')
            for t in range(2):
                r = st + 8*j + 4*t
                a(f'buffer_load_dwordx4 v[{r}:{r+3}], v2, s[56:59], s77 offen offset:{1024*t}')
        for j in range(2):
            a(f's_add_u32 s77, s76, s{74+j}')
            for t in range(2):
                r = st + 16 + 8*j + 4*t
                a(f'buffer_load_dwordx4 v[{r}:{r+3}], v2, s[52:55], s77 offen offset:{1024*t}')
    loads(0); loads(1); loads(2)
    for i in range(NB):
        rem = min(2, NB-1-i)
        a(f's_waitcnt vmcnt({8*rem})')
        if i == NB-1:
            a('s_cmp_eq_u32 s49, 3\ns_cbranch_scc1 K2_RED')
        st = SETS[i % 3]
        for t in range(2):
            for tj in range(2):
                for dj in range(2):
                    c = ACC[dj + 2*tj]
                    ra = st + 8*dj + 4*t; rb = st + 16 + 8*tj + 4*t
                    a(f'v_mfma_f32_32x32x16_bf16 v[{c}:{c+15}], v[{ra}:{ra+3}], v[{rb}:{rb+3}], v[{c}:{c+15}]')
        if i + 3 < NB: loads(i+3)
    a('K2_RED:\ns_nop 15')
    a('s_lshl_b32 s76, s49, 14\nv_add_u32 v3, s76, v2')
    for tl in range(4):
        for q in range(4):
            r = ACC[tl] + 4*q
            a(f'ds_write_b128 v3, v[{r}:{r+3}] offset:{4096*tl + 1024*q}')
    a('''s_and_b32 s76, s49, 1
s_lshr_b32 s77, s49, 1
s_lshl_b32 s78, s47, 6
s_lshl_b32 s79, s77, 5
s_add_u32 s78, s78, s79
v_and_b32 v4, 31, v1
v_add_u32 v4, s78, v4
v_lshlrev_b32 v5, 2, v4
v_lshlrev_b32 v4, 10, v4
s_lshl_b32 s78, s46, 7
s_lshl_b32 s79, s76, 6
s_add_u32 s78, s78, s79
v_lshrrev_b32 v6, 5, v1
v_lshlrev_b32 v6, 3, v6
v_add_u32 v4, v4, v6
v_add_u32 v4, s78, v4
buffer_load_dword v7, v5, s[64:67], 0 offen''')
    for q in range(4):
        a(f'buffer_load_dwordx2 v[{8+2*q}:{9+2*q}], v4, s[60:63], 0 offen offset:{16*q}')
    a('''s_waitcnt lgkmcnt(0)
s_barrier
s_lshl_b32 s76, s49, 12
v_add_u32 v3, s76, v2''')
    for q in range(4):
        for wv in range(4):
            r = 64 + 16*wv + 4*q
            a(f'ds_read_b128 v[{r}:{r+3}], v3 offset:{16384*wv + 1024*q}')
        a('s_waitcnt lgkmcnt(0)')
    a('''s_waitcnt vmcnt(0)
v_sub_f32 v6, 1.0, v7
v_cvt_pk_bf16_f32 v6, v6, v6
v_lshlrev_b32 v6, 16, v6''')
    for q in range(4):
        for p in range(2):
            r0 = 64 + 4*q + 2*p
            for k in range(2):
                a(f'''v_add_f32 v{r0+k}, v{r0+k}, v{r0+k+16}
v_add_f32 v{r0+k+32}, v{r0+k+32}, v{r0+k+48}
v_add_f32 v{r0+k}, v{r0+k}, v{r0+k+32}''')
            ar = 8 + 2*q + p
            a(f'''v_cvt_pk_bf16_f32 v16, v{r0}, v{r0+1}
v_lshlrev_b32 v17, 16, v16
v_and_b32 v16, 0xffff0000, v16
v_mul_f32 v17, v17, v6
v_mul_f32 v16, v16, v6
v_cvt_pk_bf16_f32 v16, v17, v16
v_lshlrev_b32 v18, 16, v{ar}
v_and_b32 v19, 0xffff0000, v{ar}
v_mul_f32 v18, v18, v7
v_mul_f32 v19, v19, v7
v_cvt_pk_bf16_f32 v18, v18, v19
v_lshlrev_b32 v17, 16, v16
v_and_b32 v16, 0xffff0000, v16
v_lshlrev_b32 v19, 16, v18
v_and_b32 v18, 0xffff0000, v18
v_add_f32 v17, v17, v19
v_add_f32 v16, v16, v18
v_cvt_pk_bf16_f32 v{ar}, v17, v16''')
        a(f'buffer_store_dwordx2 v[{8+2*q}:{9+2*q}], v4, s[68:71], 0 offen offset:{16*q}')
    a('K2_EXIT:\ns_endpgm')

def kd(name, vgpr):
    return f'''.amdhsa_kernel {name}
  .amdhsa_next_free_vgpr {vgpr}
  .amdhsa_next_free_sgpr 102
  .amdhsa_accum_offset {vgpr}
  .amdhsa_group_segment_fixed_size 0
  .amdhsa_kernarg_size 120
  .amdhsa_user_sgpr_count 2
  .amdhsa_user_sgpr_kernarg_segment_ptr 1
  .amdhsa_system_sgpr_workgroup_id_x 1
.end_amdhsa_kernel
'''

def main(outp):
    a = Asm()
    a('.globl k1_kernel\n.type k1_kernel,@function')
    kernel1(a)
    a('.globl k2_kernel\n.type k2_kernel,@function')
    kernel2(a)
    body = a.text()
    s = HDR + f'; @launch kernel=k1_kernel grid=({K1_GRID},1,1) block=(512,1,1) lds={K1_LDS}\n'
    s += f'; @launch kernel=k2_kernel grid=(256,1,1) block=(256,1,1) lds={K2_LDS}\n'
    s += '.amdgcn_target "amdgcn-amd-amdhsa--gfx950"\n.text\n' + body
    s += '.section .rodata,"a"\n.p2align 6\n' + kd('k1_kernel', 256) + '.p2align 6\n' + kd('k2_kernel', 256)
    open(outp, 'w').write(s)

main(sys.argv[1] if len(sys.argv) > 1 else 'gated_mix__ssm_conv_s4d__geglu_ffn__prompt.s')
```

```python
import sys, os, struct
from asmlib import Asm
SKIP = os.environ.get('SKIP', '')

HDR = open('gated_mix__ssm_conv_s4d__geglu_ffn__prompt.s.ref').read().split('; Override launch')[0]

WS_HF = 0
HF_BYTES = 64*43*2048
WS_WD = 0x600000
WD_BYTES = 16*43*2048
WS_A = 0x800000
A_BYTES = 2048*512*2
WS_G = 0xA00000
G_BYTES = 2048*4

N_CONV = 256
N_G1 = 240
N_AUX = 16
K1_GRID = N_CONV + N_G1 + N_AUX
K1_LDS = 81920
K2_LDS = 65536

LOG2E = 1.4426950408889634
def f2u(x): return '0x%08x' % struct.unpack('<I', struct.pack('<f', x))[0]

class VM:
    def __init__(self, a): self.a = a; self.q = []
    def issue(self, tag): self.q.append(tag)
    def wait(self, tag):
        idx = max(i for i, t in enumerate(self.q) if t == tag)
        n = len(self.q) - 1 - idx
        assert n <= 63, n
        self.a(f's_waitcnt vmcnt({n})')
        self.q = self.q[idx+1:]

def srd(a, s, lo, hi, size, off=0):
    if off:
        a(f's_add_u32 s{s}, s{lo}, {off}\ns_addc_u32 s{s+1}, s{hi}, 0')
    else:
        a(f's_mov_b32 s{s}, s{lo}\ns_mov_b32 s{s+1}, s{hi}')
    a(f's_and_b32 s{s+1}, s{s+1}, 0xffff\ns_mov_b32 s{s+2}, {size}\ns_mov_b32 s{s+3}, 0x00020000')

def load_ptrs(a):
    a('''s_load_dwordx16 s[16:31], s[0:1], 0
s_load_dwordx8 s[32:39], s[0:1], 64
s_load_dwordx4 s[40:43], s[0:1], 96
s_load_dwordx2 s[44:45], s[0:1], 112
v_and_b32 v1, 63, v0
v_lshrrev_b32 v2, 6, v0
s_nop 0
v_readfirstlane_b32 s49, v2
s_waitcnt lgkmcnt(0)''')

def dpp_reduce(a, op, regs):
    for m in ('row_shr:1', 'row_shr:2', 'row_shr:4', 'row_shr:8'):
        for r in regs:
            a(f'{op}_dpp v{r}, v{r}, v{r} {m} row_mask:0xf bank_mask:0xf bound_ctrl:0')
    for m, mask in (('row_bcast:15', '0xa'), ('row_bcast:31', '0xc')):
        for r in regs:
            a(f'{op}_dpp v{r}, v{r}, v{r} {m} row_mask:{mask} bank_mask:0xf')

HS_BYTES = 12288
NSLOT = 6
def gemm1_full(a):
    global XB_G
    a('G1:')
    if 'g1' in SKIP: a('s_endpgm')
    a(f'''s_sub_u32 s46, s2, {N_CONV}
s_and_b32 s47, s46, 7
s_lshl_b32 s47, s47, 1
s_bfe_u32 s48, s46, 0x10003
s_add_u32 s47, s47, s48
s_lshr_b32 s48, s46, 4''')
    srd(a, 52, 16, 17, 2097152)
    a('''s_cmp_lt_u32 s49, 2
s_cselect_b32 s56, s32, s34
s_cselect_b32 s57, s33, s35
s_and_b32 s57, s57, 0xffff
s_mov_b32 s58, 1409024
s_mov_b32 s59, 0x00020000''')
    srd(a, 64, 44, 45, HF_BYTES, WS_HF)
    a('''s_lshl_b32 s50, s47, 7
s_lshl_b32 s51, s49, 5
s_add_u32 s50, s50, s51
v_and_b32 v2, 31, v1
v_add_u32 v2, s50, v2
v_lshlrev_b32 v2, 10, v2
v_lshrrev_b32 v3, 5, v1
v_lshlrev_b32 v3, 6, v3
v_add_u32 v2, v2, v3''')
    XB = 32
    vm = VM(a)
    def xloads(S):
        for t in range(4):
            r = XB + 16*S + 4*t
            a(f'buffer_load_dwordx4 v[{r}:{r+3}], v2, s[52:55], 0 offen offset:{128*S+16*t}')
            vm.issue(('x', S))
    xloads(0)
    a('''s_and_b32 s50, s49, 1
s_mul_i32 s50, s50, 192
s_mul_i32 s51, s48, 192''')
    for i in range(3):
        a(f'''v_add_u32 v6, s50, v1
v_add_u32 v6, {64*i}, v6
v_mul_u32_u24 v7, 43691, v6
v_lshrrev_b32 v7, 19, v7
v_mul_u32_u24 v8, 12, v7
v_sub_u32 v8, v6, v8
v_lshrrev_b32 v9, 4, v7
v_lshlrev_b32 v9, 4, v9
v_add_u32 v7, v7, v9
v_mul_u32_u24 v7, 2752, v7
v_lshlrev_b32 v8, 4, v8
v_add3_u32 v{3+i}, v7, v8, s51''')
    a('s_mul_i32 s51, s49, 3072')
    def dma(j):
        S, hs = j >> 1, j & 1
        a(f's_mov_b32 s50, {(64*S + 16*hs)*2752}')
        for i in range(3):
            a(f's_add_u32 s68, s51, {(j % NSLOT)*HS_BYTES + 1024*i}\ns_mov_b32 m0, s68')
            a(f'buffer_load_dwordx4 v{3+i}, s[56:59], s50 offen lds')
            vm.issue(('w', j))
    dma(0); dma(1); xloads(1); dma(2); dma(3); xloads(2); dma(4)
    for S in range(3, 8): xloads(S)
    a(f'''v_and_b32 v8, 15, v1
v_lshrrev_b32 v9, 5, v1
v_lshlrev_b32 v9, 4, v9
v_lshrrev_b32 v10, 2, v8
v_add_u32 v9, v9, v10
v_mul_u32_u24 v9, 192, v9
v_lshrrev_b32 v10, 4, v1
v_and_b32 v10, 1, v10
v_lshlrev_b32 v10, 5, v10
v_and_b32 v11, 3, v8
v_lshlrev_b32 v11, 3, v11
v_add3_u32 v6, v9, v10, v11
v_add_u32 v7, {4*HS_BYTES}, v6''')
    ACC = [160+16*i for i in range(6)]
    for r in range(160, 256): a(f'v_mov_b32 v{r}, 0')
    ops = [(j, tp, tl) for j in range(16) for tp in range(2) for tl in range(6)]
    NB = 6; LEAD = 4
    def rd(m):
        j, tp, tl = ops[m]
        slot = j % NSLOT
        base = 6 if slot < 4 else 7
        off = (slot % 4)*HS_BYTES + (tl//3)*6144 + (8*tp)*192 + 64*(tl % 3)
        r = 8 + 4*(m % NB)
        for u in range(2):
            a(f'ds_read_b64_tr_b16 v[{r+2*u}:{r+2*u+1}], v{base} offset:{off + 4*u*192}')
    vm.wait(('w', 0)); a('s_barrier')
    issued = 0
    SYNC_AT = 2
    for m in range(len(ops)):
        j, tp, tl = ops[m]
        pos = m % 12
        if pos == SYNC_AT and j + 1 < 16:
            vm.wait(('w', j+1)); a('s_barrier')
            if j + 5 < 16: dma(j+5)
        lim = m + LEAD
        while issued <= lim and issued < len(ops):
            jj = ops[issued][0]
            if jj > j and not (pos >= SYNC_AT): break
            rd(issued); issued += 1
        if pos == 0 and tp == 0 and (j & 1) == 0: vm.wait(('x', j >> 1)) if ('x', j >> 1) in vm.q else None
        outstanding = issued - m - 1
        a(f's_waitcnt lgkmcnt({2*outstanding})')
        S = j >> 1; t = 2*(j & 1) + tp
        xb = XB + 16*S + 4*t
        r = 8 + 4*(m % NB); c = ACC[tl]
        a(f'v_mfma_f32_32x32x16_bf16 v[{c}:{c+15}], v[{r}:{r+3}], v[{xb}:{xb+3}], v[{c}:{c+15}]')
    C1 = -2*0.7978845608028654*LOG2E
    a(f'''s_mov_b32 s70, {f2u(C1)}
s_mov_b32 s71, {f2u(C1)}
s_mov_b32 s72, {f2u(0.044715)}
s_mov_b32 s73, {f2u(0.044715)}''')
    a('''s_lshl_b32 s50, s47, 2
s_add_u32 s50, s50, s49
s_mul_i32 s50, s50, 43
s_mul_i32 s51, s48, 3
s_add_u32 s50, s50, s51
s_lshl_b32 s50, s50, 11
v_lshlrev_b32 v2, 4, v1''')
    for ft in range(3):
        if ft == 1:
            a('s_cmp_eq_u32 s48, 14\ns_cbranch_scc1 G1_DONE')
        g0 = ACC[ft]; u0 = ACC[3+ft]
        ob = 32 + 8*ft
        for i in range(0, 16, 2):
            a(f'''v_cvt_pk_bf16_f32 v8, v{g0+i}, v{g0+i+1}
v_cvt_pk_bf16_f32 v9, v{u0+i}, v{u0+i+1}
v_lshlrev_b32 v10, 16, v8
v_and_b32 v11, 0xffff0000, v8
v_lshlrev_b32 v12, 16, v9
v_and_b32 v13, 0xffff0000, v9
v_pk_mul_f32 v[14:15], v[10:11], v[10:11]
v_pk_fma_f32 v[14:15], v[14:15], s[72:73], 1.0 op_sel_hi:[1,1,0]
v_pk_mul_f32 v[14:15], v[14:15], v[10:11]
v_pk_mul_f32 v[14:15], v[14:15], s[70:71]
v_exp_f32 v14, v14
v_exp_f32 v15, v15
v_pk_add_f32 v[14:15], v[14:15], 1.0 op_sel_hi:[1,0]
v_rcp_f32 v14, v14
v_rcp_f32 v15, v15
v_pk_mul_f32 v[14:15], v[14:15], v[10:11]
v_cvt_pk_bf16_f32 v8, v14, v15
v_lshlrev_b32 v14, 16, v8
v_and_b32 v15, 0xffff0000, v8
v_pk_mul_f32 v[14:15], v[14:15], v[12:13]
v_cvt_pk_bf16_f32 v{ob + i//2}, v14, v15''')
        if ft == 2: a('s_add_u32 s50, s50, 4096')
        for t in range(2):
            a(f'buffer_store_dwordx4 v[{ob+4*t}:{ob+3+4*t}], v2, s[64:67], s50 offen offset:{2048*(ft&1) + 1024*t}')
    a('G1_DONE:\ns_endpgm')

def aux(a):
    a('AUX:')
    if 'aux' in SKIP: a('s_endpgm')
    a(f's_sub_u32 s46, s2, {N_CONV+N_G1}\ns_lshl_b32 s46, s46, 2\ns_add_u32 s46, s46, s49')
    srd(a, 52, 36, 37, 1409024)
    srd(a, 56, 44, 45, WD_BYTES, WS_WD)
    srd(a, 60, 16, 17, 2097152)
    srd(a, 64, 38, 39, 1024)
    srd(a, 68, 44, 45, G_BYTES, WS_G)
    a('''v_lshlrev_b32 v3, 4, v1
s_lshl_b32 s47, s46, 15
buffer_load_dwordx4 v[16:19], v3, s[64:67], 0 offen''')
    for k in range(32):
        a(f's_add_u32 s48, s47, {1024*k}\nbuffer_load_dwordx4 v[{64+4*k}:{67+4*k}], v3, s[60:63], s48 offen')
    a('''v_lshrrev_b32 v2, 5, v1
v_lshlrev_b32 v2, 10, v2
v_and_b32 v4, 31, v1
v_lshlrev_b32 v4, 4, v4
v_add_u32 v2, v2, v4
s_lshl_b32 s51, s49, 14
v_and_b32 v8, 15, v1
v_lshrrev_b32 v9, 5, v1
v_lshlrev_b32 v9, 2, v9
v_lshrrev_b32 v10, 2, v8
v_add_u32 v9, v9, v10
v_lshlrev_b32 v9, 9, v9
v_lshrrev_b32 v10, 4, v1
v_and_b32 v10, 1, v10
v_lshlrev_b32 v10, 5, v10
v_and_b32 v11, 3, v8
v_lshlrev_b32 v11, 3, v11
v_add3_u32 v4, v9, v10, v11
v_add_u32 v4, s51, v4
s_mov_b32 s47, s46
AUX_WD:
s_lshr_b32 s48, s47, 1
s_and_b32 s50, s47, 1
s_lshl_b32 s72, s48, 15
s_lshl_b32 s73, s50, 9
s_add_u32 s72, s72, s73''')
    for q in range(16):
        a(f's_add_u32 s73, s72, {2048*q}\ns_add_u32 s74, s51, {1024*q}\ns_mov_b32 m0, s74\nbuffer_load_dwordx4 v2, s[52:55], s73 offen lds')
    a('''s_lshl_b32 s73, s50, 3
s_mul_i32 s73, s73, 43
s_add_u32 s73, s73, s48
s_lshl_b32 s73, s73, 11
s_waitcnt vmcnt(0)''')
    for dg in range(2):
        for dl in range(4):
            dtl = 4*dg + dl
            for t in range(2):
                for hi in range(2):
                    r = 20 + 8*dl + 4*t + 2*hi
                    a(f'ds_read_b64_tr_b16 v[{r}:{r+1}], v4 offset:{(16*t+8*hi)*512 + 64*dtl}')
        a('s_waitcnt lgkmcnt(0)')
        for dl in range(4):
            dtl = 4*dg + dl
            a(f's_add_u32 s74, s73, {dtl*43*2048}')
            for t in range(2):
                r = 20 + 8*dl + 4*t
                a(f'buffer_store_dwordx4 v[{r}:{r+3}], v3, s[56:59], s74 offen offset:{1024*t}')
        a('s_nop 1')
    a('''s_add_u32 s47, s47, 64
s_cmp_lt_u32 s47, 86
s_cbranch_scc1 AUX_WD''')
    a('s_waitcnt vmcnt(0)')
    for i in range(4):
        a(f'v_lshlrev_b32 v{20+2*i}, 16, v{16+i}\nv_and_b32 v{21+2*i}, 0xffff0000, v{16+i}')
    for k in range(32):
        b = 64 + 4*k
        for i in range(4):
            a(f'''v_lshlrev_b32 v8, 16, v{b+i}
v_and_b32 v9, 0xffff0000, v{b+i}
v_pk_mul_f32 v[8:9], v[8:9], v[{20+2*i}:{21+2*i}]
v_cvt_pk_bf16_f32 v8, v8, v9
v_and_b32 v9, 0xffff0000, v8
v_lshlrev_b32 v8, 16, v8''')
            if i == 0: a('v_pk_add_f32 v[10:11], v[8:9], 0 op_sel_hi:[1,0]')
            else: a('v_pk_add_f32 v[10:11], v[10:11], v[8:9]')
        a(f'v_add_f32 v{b}, v10, v11')
    dpp_reduce(a, 'v_add_f32', [64+4*k for k in range(32)])
    a('v_mov_b32 v20, 0')
    for k in range(32):
        a(f'v_readlane_b32 s48, v{64+4*k}, 63\nv_writelane_b32 v20, s48, {k}')
    a(f'''v_cvt_pk_bf16_f32 v20, v20, v20
v_lshlrev_b32 v20, 16, v20
v_mul_f32 v20, {f2u(-LOG2E)}, v20
v_exp_f32 v20, v20
v_add_f32 v20, 1.0, v20
v_rcp_f32 v20, v20
v_cvt_pk_bf16_f32 v20, v20, v20
v_lshlrev_b32 v20, 16, v20
s_lshl_b32 s48, s46, 7
v_lshlrev_b32 v21, 2, v1
v_cmp_gt_u32 vcc, 32, v1
s_and_saveexec_b64 s[74:75], vcc
buffer_store_dword v20, v21, s[68:71], s48 offen
s_endpgm''')

W_CH = 33152
UT0 = 2*W_CH; UT_CH = 7680
PB_OFF = 0; KC_OFF = 4096; KC_SZ = 2688; R_OFF = 9472

def conv(a):
    a('CONV:')
    if 'conv' in SKIP: a('s_endpgm')
    a('''s_and_b32 s46, s2, 7
s_lshl_b32 s46, s46, 5
s_lshr_b32 s47, s2, 3
s_add_u32 s46, s46, s47
s_lshr_b32 s90, s49, 1
s_and_b32 s91, s49, 1
s_lshl_b32 s47, s46, 1
s_add_u32 s47, s47, s90''')
    srd(a, 52, 16, 17, 2097152)
    srd(a, 56, 18, 19, 131072)
    srd(a, 60, 20, 21, 131072)
    srd(a, 64, 22, 23, 131072)
    srd(a, 68, 24, 25, 131072)
    srd(a, 72, 44, 45, A_BYTES, WS_A)
    a('''s_lshl_b32 s48, s46, 2
s_add_u32 s76, s26, s48
s_addc_u32 s77, s27, 0
s_add_u32 s78, s28, s48
s_addc_u32 s79, s29, 0
s_load_dword s80, s[76:77], 0
s_load_dword s81, s[78:79], 0
v_lshlrev_b32 v2, 10, v0
v_add_u32 v2, s48, v2''')
    for i in range(8):
        a(f's_mov_b32 s48, {i*256*1024}\nbuffer_load_dword v{8+i}, v2, s[52:55], s48 offen')
    a('''s_lshl_b32 s48, s47, 8
v_lshlrev_b32 v3, 2, v1
v_add_u32 v3, s48, v3
buffer_load_dword v24, v3, s[56:59], 0 offen
buffer_load_dword v25, v3, s[60:63], 0 offen
buffer_load_dword v26, v3, s[64:67], 0 offen
buffer_load_dword v27, v3, s[68:71], 0 offen''')
    a(f'''s_mul_i32 s92, s90, {W_CH}
s_mul_i32 s93, s90, {UT_CH}
s_add_u32 s93, s93, {UT0}
s_mul_i32 s50, s91, 1280
s_add_u32 s50, s50, s93
v_lshlrev_b32 v4, 4, v1
v_add_u32 v4, s50, v4
v_mov_b32 v28, 0
v_mov_b32 v29, 0
v_mov_b32 v30, 0
v_mov_b32 v31, 0
ds_write_b128 v4, v[28:31]
v_cmp_gt_u32 vcc, 16, v1
s_and_saveexec_b64 s[82:83], vcc
ds_write_b128 v4, v[28:31] offset:1024
s_mov_b64 exec, s[82:83]''')
    IX = 96
    a(f'''s_lshl_b32 s50, s91, 10
v_lshlrev_b32 v5, 3, v1
v_add_u32 v5, s50, v5
v_sub_u32 v5, 2047, v5
s_movk_i32 s48, {0x4300-128}
s_add_u32 s51, s92, {KC_OFF}''')
    for rp in range(2):
        for e in range(8):
            ix = IX + 8*rp + e
            a(f'''v_subrev_u32 v6, {512*rp + e}, v5
v_cvt_f32_u32 v7, v6
v_cvt_pk_bf16_f32 v7, v7, v7
v_and_b32 v7, 0xffff, v7
v_subrev_u32 v7, s48, v7
v_cmp_gt_u32 vcc, 128, v6
v_cndmask_b32 v{ix}, v7, v6, vcc
v_lshl_add_u32 v{ix}, v{ix}, 2, s51''')
    a(f'''v_lshrrev_b32 v5, 5, v0
v_mul_u32_u24 v5, 80, v5
v_and_b32 v6, 31, v0
v_lshlrev_b32 v6, 1, v6
v_add_u32 v5, v5, v6
v_add_u32 v5, {UT0 + 32*80}, v5
s_waitcnt vmcnt(4)''')
    for i in range(8):
        a(f'ds_write_b16 v5, v{8+i} offset:{640*i}\nds_write_b16_d16_hi v5, v{8+i} offset:{640*i + UT_CH}')
    a(f'''s_waitcnt vmcnt(0) lgkmcnt(0)
s_cmp_eq_u32 s90, 1
s_cselect_b32 s48, 0, 16
s_lshl_b32 s80, s80, s48
s_and_b32 s80, s80, 0xffff0000
s_lshl_b32 s81, s81, s48
s_and_b32 s81, s81, 0xffff0000
v_mov_b32 v28, s80
v_mul_f32 v28, {f2u(LOG2E)}, v28
v_exp_f32 v28, v28
v_cvt_pk_bf16_f32 v28, v28, v28
v_lshlrev_b32 v28, 16, v28''')
    a('''v_lshlrev_b32 v32, 16, v24
v_and_b32 v33, 0xffff0000, v24
v_lshlrev_b32 v34, 16, v25
v_and_b32 v35, 0xffff0000, v25
v_lshlrev_b32 v36, 16, v26
v_and_b32 v37, 0xffff0000, v26
v_lshlrev_b32 v38, 16, v27
v_and_b32 v39, 0xffff0000, v27
v_max3_f32 v40, |v36|, |v37|, |v38|
v_max_f32 v40, |v39|, v40''')
    dpp_reduce(a, 'v_max_f32', [40])
    a(f'''v_readlane_b32 s50, v40, 63
v_mov_b32 v40, s50
v_cmp_eq_f32 vcc, 0, v40
v_cndmask_b32 v40, v40, 1.0, vcc
v_rcp_f32 v41, v40
v_mul_f32 v42, v40, v28
v_add_f32 v42, v42, v42''')
    for k in range(2):
        la, ai, cr, ci = 32+k, 34+k, 36+k, 38+k
        o = 44 + 4*k
        a(f'''v_mul_f32 v{la}, {f2u(LOG2E)}, v{la}
v_exp_f32 v{la}, v{la}
v_cvt_pk_bf16_f32 v{la}, v{la}, v{la}
v_lshlrev_b32 v{la}, 16, v{la}
v_mul_f32 v{la}, v{la}, v28
v_mul_f32 v{o}, {f2u(-LOG2E)}, v{la}
v_mul_f32 v{ai}, v{ai}, v28
v_mul_f32 v{o+1}, {f2u(1/(2*3.141592653589793))}, v{ai}
v_mul_f32 v{o+2}, v{cr}, v41
v_mul_f32 v{o+3}, v{ci}, v41''')
    a(f'''s_lshl_b32 s50, s91, 11
s_add_u32 s50, s50, s92
v_lshlrev_b32 v4, 5, v1
v_add_u32 v4, s50, v4
ds_write_b128 v4, v[44:47]
ds_write_b128 v4, v[48:51] offset:16''')
    for k in range(2):
        o = 44 + 4*k
        a(f'''v_mul_f32 v8, 0x45000000, v{o}
v_mul_f32 v9, 0x45000000, v{o+1}
v_exp_f32 v8, v8
v_fract_f32 v9, v9
v_cos_f32 v10, v9
v_sin_f32 v11, v9
v_mul_f32 v10, v10, v{o+2}
v_fma_f32 v10, -v11, v{o+3}, v10
v_mul_f32 v{52+k}, v10, v8''')
    a('v_add_f32 v52, v52, v53')
    dpp_reduce(a, 'v_add_f32', [52])
    a('''v_readlane_b32 s94, v52, 63
s_cmp_eq_u32 s91, 0
s_cselect_b32 s94, s94, 0''')
    a(f'''s_lshl_b32 s48, s91, 10
s_add_u32 s48, s48, s50
v_lshrrev_b32 v4, 4, v1
v_lshlrev_b32 v4, 6, v4
v_add_u32 v4, s48, v4
v_and_b32 v5, 15, v1
v_cvt_f32_u32 v6, v5
s_waitcnt lgkmcnt(0)''')
    KACC = [192, 196, 200, 204]
    for r in range(192, 208): a(f'v_mov_b32 v{r}, 0')
    YP = [64, 68, 72, 76]
    XP = [80, 84, 88, 92]
    for c in range(4):
        a(f'ds_read_b128 v[{48+4*c}:{51+4*c}], v4 offset:{16*c}')
    a('s_mov_b32 s95, 0\nKG_LOOP:\ns_nop 1')
    for c in range(4):
        P = 48 + 4*c
        a(f'''s_waitcnt lgkmcnt(3)
v_mul_f32 v12, v{P}, v6
v_mul_f32 v13, v{P+1}, v6
v_exp_f32 v12, v12
v_fract_f32 v13, v13
v_cos_f32 v8, v13
v_sin_f32 v9, v13
v_pk_mul_f32 v[8:9], v[8:9], v[12:13] op_sel_hi:[1,0]''')
        for si in range(4):
            a(f'''v_cvt_pk_f16_f32 v{YP[si]+c}, v8, v9
v_pk_mul_f32 v[10:11], v[8:9], v[8:9] op_sel:[0,0] op_sel_hi:[0,1]
v_pk_fma_f32 v[8:9], v[8:9], v[8:9], v[10:11] op_sel:[1,1,0] op_sel_hi:[0,1,1] neg_lo:[1,0,0]''')
        for si in range(4):
            a(f'''v_pk_mul_f32 v[10:11], v[{P+2}:{P+3}], v[8:9] op_sel:[0,0] op_sel_hi:[0,1]
v_pk_fma_f32 v[10:11], v[{P+2}:{P+3}], v[8:9], v[10:11] op_sel:[1,1,0] op_sel_hi:[1,0,1] neg_lo:[1,0,0] neg_hi:[1,0,1]
v_cvt_pk_f16_f32 v{XP[si]+c}, v10, v11''')
            if si < 3:
                a('''v_pk_mul_f32 v[10:11], v[8:9], v[8:9] op_sel:[0,0] op_sel_hi:[0,1]
v_pk_fma_f32 v[8:9], v[8:9], v[8:9], v[10:11] op_sel:[1,1,0] op_sel_hi:[0,1,1] neg_lo:[1,0,0]''')
        a(f'ds_read_b128 v[{P}:{P+3}], v4 offset:{256+16*c}')
    for si in range(4):
        k = KACC[si]
        a(f'v_mfma_f32_16x16x32_f16 v[{k}:{k+3}], v[{XP[si]}:{XP[si]+3}], v[{YP[si]}:{YP[si]+3}], v[{k}:{k+3}]')
    a('''v_add_u32 v4, 256, v4
s_add_u32 s95, s95, 1
s_cmp_lt_u32 s95, 4
s_cbranch_scc1 KG_LOOP
s_nop 7''')
    a(f'''s_mul_i32 s50, s91, {KC_SZ}
s_add_u32 s50, s50, s51
v_lshrrev_b32 v4, 4, v1
v_lshlrev_b32 v4, 6, v4
v_and_b32 v5, 15, v1
v_add_u32 v4, v4, v5
v_lshl_add_u32 v4, v4, 2, s50
v_cmp_le_u32 s[82:83], 32, v1
v_mov_b32 v8, s50
v_mul_f32 v9, s94, v42
s_waitcnt lgkmcnt(0)''')
    for si in range(4):
        for i in range(4):
            r = KACC[si] + i
            a(f'v_mul_f32 v{r}, v{r}, v42')
    a(f'ds_write_b32 v8, v9 offset:{640*4}')
    for si in range(4):
        base = [0, 128, 256, 384][si]
        for i in range(4):
            r = KACC[si] + i
            if si == 1 and i == 0: a('s_mov_b64 exec, s[82:83]')
            a(f'ds_write_b32 v4, v{r} offset:{(base + 16*i)*4}')
    a('s_mov_b64 exec, -1\ns_waitcnt lgkmcnt(0)\ns_barrier')
    for k in range(16):
        a(f'ds_read_b32 v{8+k}, v{IX+k}\nds_read_b32 v{24+k}, v{IX+k} offset:{KC_SZ}')
    a(f'''s_lshl_b32 s50, s91, 11
s_add_u32 s50, s50, s92
s_add_u32 s50, s50, {R_OFF}
v_lshlrev_b32 v4, 4, v1
v_add_u32 v4, s50, v4
v_mov_b32 v40, 0
v_mov_b32 v41, 0
v_mov_b32 v42, 0
v_mov_b32 v43, 0
s_waitcnt lgkmcnt(0)''')
    for k in range(0, 16, 2):
        a(f'''v_pk_add_f32 v[{8+k}:{9+k}], v[{8+k}:{9+k}], v[{24+k}:{25+k}]
v_cvt_pk_bf16_f32 v{48+k//2}, v{8+k}, v{9+k}''')
    a(f'''ds_write_b128 v4, v[48:51]
ds_write_b128 v4, v[52:55] offset:1024
v_mov_b32 v5, s92
ds_write_b128 v5, v[40:43] offset:{R_OFF + 4096}
s_waitcnt lgkmcnt(0)
s_barrier
ds_read_b128 v[8:11], v4
ds_read_b128 v[12:15], v4 offset:16
ds_read_b128 v[24:27], v4 offset:1024
ds_read_b128 v[28:31], v4 offset:1040''')
    a(f'''s_lshl_b32 s50, s91, 7
v_add_u32 v5, s50, v1
v_sub_u32 v5, {258-64}, v5
v_and_b32 v6, 7, v5
v_lshlrev_b32 v5, 7, v5
v_lshl_add_u32 v5, v6, 4, v5
v_add_u32 v5, s92, v5
v_lshl_add_u32 v6, v1, 4, s92
v_cmp_gt_u32 s[82:83], 24, v1
s_cmp_eq_u32 s91, 0
s_cselect_b32 s82, s82, 0
s_cselect_b32 s83, s83, 0
s_waitcnt lgkmcnt(0)
s_barrier
s_mov_b64 exec, s[82:83]
ds_write_b128 v6, v[40:43]
s_mov_b64 exec, -1''')
    for rp in range(2):
        E = 8 + 16*rp; Q0 = 48; Q1 = 54; E1 = 60
        for k in range(6):
            a(f'v_alignbit_b32 v{Q0+k}, v{E+k+1}, v{E+k}, 16')
            a(f'v_alignbit_b32 v{Q1+k}, v{E+k+2}, v{E+k+1}, 16')
            a(f'v_mov_b32 v{E1+k}, v{E+k+1}')
        for rho in range(8):
            src = [E, Q0, E1, Q1, E+2, Q0+2, E1+2, Q1+2][rho]
            a(f'v_xor_b32 v7, {16*(7-rho)}, v5')
            a(f'ds_write_b128 v7, v[{src}:{src+3}] offset:{8192 if rp == 0 else 0}')
    a(f'''v_and_b32 v8, 31, v1
v_lshrrev_b32 v9, 5, v1
v_lshrrev_b32 v10, 3, v8
v_sub_u32 v10, v10, v9
s_lshl_b32 s50, s91, 1
s_sub_u32 s50, 3, s50
v_add_u32 v10, s50, v10
v_and_b32 v11, 7, v8
v_xor_b32 v11, v11, v10
v_and_b32 v11, 7, v11
v_lshlrev_b32 v10, 7, v10
v_lshl_add_u32 v10, v11, 4, v10
v_add_u32 v4, s92, v10
v_xor_b32 v5, 64, v4
v_mul_u32_u24 v10, 80, v8
v_lshl_add_u32 v10, v9, 4, v10
s_lshl_b32 s50, s91, 5
s_add_u32 s50, s50, s93
s_add_u32 s50, s50, {32*80 - 80*31}
v_add_u32 v6, s50, v10''')
    A0, A1 = 192, 208
    for r in range(192, 224): a(f'v_mov_b32 v{r}, 0')
    a('s_waitcnt lgkmcnt(0)\ns_barrier')
    FS = [64, 80, 96]
    def rd(d):
        f = FS[d % 3]; va = 4 if d % 2 == 0 else 5
        a(f'''ds_read_b128 v[{f}:{f+3}], v{va} offset:{512*d}
ds_read_b128 v[{f+8}:{f+11}], v6 offset:{80*(31-d)}
ds_read_b128 v[{f+12}:{f+15}], v6 offset:{80*(31-d)+2560}
ds_read_b128 v[{f+4}:{f+7}], v{va} offset:{512*d+16384}''')
    rd(0); rd(1)
    for d in range(32):
        if d + 2 < 32: rd(d+2)
        rem = min(2, 31-d)
        a(f's_waitcnt lgkmcnt({4*rem})')
        f = FS[d % 3]
        a(f'''v_mfma_f32_32x32x16_bf16 v[{A0}:{A0+15}], v[{f}:{f+3}], v[{f+8}:{f+11}], v[{A0}:{A0+15}]
v_mfma_f32_32x32x16_bf16 v[{A1}:{A1+15}], v[{f}:{f+3}], v[{f+12}:{f+15}], v[{A1}:{A1+15}]
v_mfma_f32_32x32x16_bf16 v[{A1}:{A1+15}], v[{f+4}:{f+7}], v[{f+8}:{f+11}], v[{A1}:{A1+15}]''')
    a('s_nop 15\ns_nop 3\ns_cmp_eq_u32 s91, 0\ns_cbranch_scc1 CV_NOSWAP')
    for i in range(16): a(f'v_swap_b32 v{A0+i}, v{A1+i}')
    a(f'''CV_NOSWAP:
s_lshl_b32 s50, s91, 12
s_add_u32 s50, s50, s92
v_lshl_add_u32 v4, v1, 4, s50
v_xor_b32 v5, 4096, v4
s_barrier''')
    for q in range(4):
        a(f'ds_write_b128 v4, v[{A1+4*q}:{A1+4*q+3}] offset:{1024*q}')
    a(f'''v_and_b32 v8, 31, v1
v_lshrrev_b32 v9, 5, v1
v_mul_u32_u24 v10, 80, v8
v_lshl_add_u32 v10, v9, 3, v10
s_mul_i32 s50, s91, 2560
s_add_u32 s50, s50, s93
s_add_u32 s50, s50, 2560
v_add_u32 v6, s50, v10
v_lshlrev_b32 v10, 6, v8
v_lshl_add_u32 v10, v9, 3, v10
s_lshl_b32 s50, s47, 12
s_lshl_b32 s48, s91, 11
s_add_u32 s50, s50, s48
v_add_u32 v7, s50, v10
v_mov_b32 v2, s81
v_mov_b32 v3, s81''')
    for q in range(4):
        a(f'ds_read_b64 v[{64+2*q}:{65+2*q}], v6 offset:{16*q}')
    a('s_waitcnt lgkmcnt(0)\ns_barrier')
    for q in range(4):
        a(f'ds_read_b128 v[{80+4*q}:{83+4*q}], v5 offset:{1024*q}')
    a('s_waitcnt lgkmcnt(0)')
    for q in range(4):
        ur = 64 + 2*q
        for p in range(2):
            y0 = A0 + 4*q + 2*p; o0 = 80 + 4*q + 2*p
            a(f'''v_pk_add_f32 v[{y0}:{y0+1}], v[{y0}:{y0+1}], v[{o0}:{o0+1}]
v_lshlrev_b32 v8, 16, v{ur+p}
v_and_b32 v9, 0xffff0000, v{ur+p}
v_pk_mul_f32 v[8:9], v[8:9], v[2:3]
v_cvt_pk_bf16_f32 v8, v8, v9
v_cvt_pk_bf16_f32 v10, v{y0}, v{y0+1}
v_and_b32 v9, 0xffff0000, v8
v_lshlrev_b32 v8, 16, v8
v_and_b32 v11, 0xffff0000, v10
v_lshlrev_b32 v10, 16, v10
v_pk_add_f32 v[8:9], v[8:9], v[10:11]
v_cvt_pk_bf16_f32 v{ur+p}, v8, v9''')
        a(f'buffer_store_dwordx2 v[{ur}:{ur+1}], v7, s[72:75], 0 offen offset:{16*q}')
    a('s_endpgm')

def kernel1(a):
    a('.p2align 8')
    a.l.append('k1_kernel:')
    a(f's_cmp_ge_u32 s2, {K1_GRID}\ns_cbranch_scc1 K1_EXIT')
    load_ptrs(a)
    a(f's_cmp_lt_u32 s2, {N_CONV}\ns_cbranch_scc1 CONV')
    a(f's_cmp_lt_u32 s2, {N_CONV+N_G1}\ns_cbranch_scc1 G1_J')
    a('s_branch AUX')
    a('G1_J:\ns_branch G1')
    a('K1_EXIT:\ns_endpgm')
    conv(a); gemm1_full(a); aux(a)

def kernel2(a):
    a('.p2align 8')
    a.l.append('k2_kernel:')
    a('s_cmp_ge_u32 s2, 256\ns_cbranch_scc1 K2_EXIT')
    load_ptrs(a)
    a('''s_lshr_b32 s46, s2, 5
s_and_b32 s47, s2, 7
s_lshl_b32 s47, s47, 2
s_bfe_u32 s48, s2, 0x20003
s_add_u32 s47, s47, s48''')
    srd(a, 52, 44, 45, HF_BYTES, WS_HF)
    srd(a, 56, 44, 45, WD_BYTES, WS_WD)
    srd(a, 60, 44, 45, A_BYTES, WS_A)
    srd(a, 64, 44, 45, G_BYTES, WS_G)
    srd(a, 68, 40, 41, A_BYTES)
    a('v_lshlrev_b32 v2, 4, v1')
    a(f'''s_mul_i32 s72, s46, {2*43*2048}
s_add_u32 s73, s72, {43*2048}
s_mul_i32 s74, s47, {2*43*2048}
s_add_u32 s75, s74, {43*2048}''')
    ACC = [192, 208, 224, 240]
    SETS = [32, 64, 96, 128]
    NS = len(SETS)
    NB = 11
    vm = VM(a)
    def loads(i):
        st = SETS[i % NS]
        a(f'''s_add_u32 s76, s49, {4*i}
s_min_u32 s76, s76, 42
s_lshl_b32 s76, s76, 11''')
        for j in range(2):
            a(f's_add_u32 s77, s76, s{72+j}')
            for t in range(2):
                r = st + 8*j + 4*t
                a(f'buffer_load_dwordx4 v[{r}:{r+3}], v2, s[56:59], s77 offen offset:{1024*t}'); vm.issue(i)
        for j in range(2):
            a(f's_add_u32 s77, s76, s{74+j}')
            for t in range(2):
                r = st + 16 + 8*j + 4*t
                a(f'buffer_load_dwordx4 v[{r}:{r+3}], v2, s[52:55], s77 offen offset:{1024*t}'); vm.issue(i)
    for i in range(NS): loads(i)
    a('''s_and_b32 s76, s49, 1
s_lshr_b32 s77, s49, 1
s_lshl_b32 s78, s47, 6
s_lshl_b32 s79, s77, 5
s_add_u32 s78, s78, s79
v_and_b32 v4, 31, v1
v_add_u32 v4, s78, v4
v_lshlrev_b32 v5, 2, v4
v_lshlrev_b32 v3, 1, v4
v_lshlrev_b32 v4, 10, v4
s_lshl_b32 s78, s46, 6
s_lshl_b32 s79, s76, 5
s_add_u32 s78, s78, s79
v_lshrrev_b32 v6, 5, v1
v_lshlrev_b32 v7, 3, v6
v_add_u32 v4, v4, v7
s_lshl_b32 s79, s78, 1
v_add_u32 v4, s79, v4
v_lshlrev_b32 v6, 14, v6
v_add_u32 v3, v3, v6
s_lshl_b32 s78, s78, 12
buffer_load_dword v7, v5, s[64:67], 0 offen''')
    vm.issue('e')
    for q in range(4):
        for e in range(4):
            a(f's_add_u32 s79, s78, {(8*q+e)*4096}\nbuffer_load_ushort v{8+4*q+e}, v3, s[60:63], s79 offen'); vm.issue('e')
    for r in range(192, 256): a(f'v_mov_b32 v{r}, 0')
    for i in range(NB):
        vm.wait(i)
        if i == NB-1:
            a('s_cmp_eq_u32 s49, 3\ns_cbranch_scc1 K2_RED')
        st = SETS[i % NS]
        for t in range(2):
            for tj in range(2):
                for dj in range(2):
                    c = ACC[dj + 2*tj]
                    ra = st + 8*dj + 4*t; rb = st + 16 + 8*tj + 4*t
                    a(f'v_mfma_f32_32x32x16_bf16 v[{c}:{c+15}], v[{ra}:{ra+3}], v[{rb}:{rb+3}], v[{c}:{c+15}]')
        if i + NS < NB: loads(i+NS)
    a('K2_RED:\ns_nop 15')
    a('s_lshl_b32 s76, s49, 14\nv_add_u32 v24, s76, v2')
    for tl in range(4):
        for q in range(4):
            r = ACC[tl] + 4*q
            a(f'ds_write_b128 v24, v[{r}:{r+3}] offset:{4096*tl + 1024*q}')
    a('''s_waitcnt lgkmcnt(0)
s_barrier
s_lshl_b32 s76, s49, 12
v_add_u32 v24, s76, v2''')
    for q in range(4):
        for wv in range(4):
            r = 64 + 16*wv + 4*q
            a(f'ds_read_b128 v[{r}:{r+3}], v24 offset:{16384*wv + 1024*q}')
    a('''s_waitcnt vmcnt(0)
v_sub_f32 v26, 1.0, v7
v_cvt_pk_bf16_f32 v26, v26, v26
v_lshlrev_b32 v26, 16, v26
v_mov_b32 v27, v26
v_mov_b32 v28, v7
v_mov_b32 v29, v7''')
    for q in range(4):
        a(f's_waitcnt lgkmcnt({4*(3-q)})')
        for p in range(2):
            r0 = 64 + 4*q + 2*p
            a(f'''v_pk_add_f32 v[{r0}:{r0+1}], v[{r0}:{r0+1}], v[{r0+16}:{r0+17}]
v_pk_add_f32 v[{r0+32}:{r0+33}], v[{r0+32}:{r0+33}], v[{r0+48}:{r0+49}]
v_pk_add_f32 v[{r0}:{r0+1}], v[{r0}:{r0+1}], v[{r0+32}:{r0+33}]''')
            a0 = 8 + 4*q + 2*p
            a(f'''v_cvt_pk_bf16_f32 v40, v{r0}, v{r0+1}
v_and_b32 v41, 0xffff0000, v40
v_lshlrev_b32 v40, 16, v40
v_pk_mul_f32 v[40:41], v[40:41], v[26:27]
v_cvt_pk_bf16_f32 v40, v40, v41
v_lshlrev_b32 v42, 16, v{a0}
v_lshlrev_b32 v43, 16, v{a0+1}
v_pk_mul_f32 v[42:43], v[42:43], v[28:29]
v_cvt_pk_bf16_f32 v42, v42, v43
v_and_b32 v41, 0xffff0000, v40
v_lshlrev_b32 v40, 16, v40
v_and_b32 v43, 0xffff0000, v42
v_lshlrev_b32 v42, 16, v42
v_pk_add_f32 v[40:41], v[40:41], v[42:43]
v_cvt_pk_bf16_f32 v{30+p}, v40, v41''')
        a(f'buffer_store_dwordx2 v[30:31], v4, s[68:71], 0 offen offset:{16*q}\ns_nop 1')
    a('K2_EXIT:\ns_endpgm')

def kd(name, vgpr):
    return f'''.amdhsa_kernel {name}
  .amdhsa_next_free_vgpr {vgpr}
  .amdhsa_next_free_sgpr 102
  .amdhsa_accum_offset {vgpr}
  .amdhsa_group_segment_fixed_size 0
  .amdhsa_kernarg_size 120
  .amdhsa_user_sgpr_count 2
  .amdhsa_user_sgpr_kernarg_segment_ptr 1
  .amdhsa_system_sgpr_workgroup_id_x 1
.end_amdhsa_kernel
'''

def main(outp):
    a = Asm()
    a('.globl k1_kernel\n.type k1_kernel,@function')
    kernel1(a)
    a('.globl k2_kernel\n.type k2_kernel,@function')
    kernel2(a)
    body = a.text()
    s = HDR + f'; @launch kernel=k1_kernel grid=({K1_GRID},1,1) block=(256,1,1) lds={K1_LDS}\n'
    s += f'; @launch kernel=k2_kernel grid=(256,1,1) block=(256,1,1) lds={K2_LDS}\n'
    s += '.amdgcn_target "amdgcn-amd-amdhsa--gfx950"\n.text\n' + body
    s += '.section .rodata,"a"\n.p2align 6\n' + kd('k1_kernel', 256) + '.p2align 6\n' + kd('k2_kernel', 256)
    open(outp, 'w').write(s)

main(sys.argv[1] if len(sys.argv) > 1 else 'v2.s')
```

```python
import sys, os, struct
from asmlib import Asm
SKIP = os.environ.get('SKIP', '')
PROF = os.environ.get('PROF', '') == '1'
CF = os.environ.get('CF', '1') == '1'
GPRIO = int(os.environ.get('GPRIO', '0'))
CPL = os.environ.get('CPL', '0') == '1'
P2D = os.environ.get('P2D', '1') == '1'
ULATE = os.environ.get('ULATE', '0') == '1'
WS_P = 0xB00000
STAMPS = [84,85,86,87,88,89,96,97,98,99]
class Prof:
    def __init__(self): self.n = 0
    def stamp(self, a):
        if not PROF: return
        r = STAMPS[self.n]; self.n += 1
        a(f'{"s_memtime" if os.environ.get("PROFC") else "s_memrealtime"} s[100:101]\ns_waitcnt lgkmcnt(0)\ns_mov_b32 s{r}, s100')
    def dump(self, a, kidx):
        if not PROF: return
        self.stamp(a)
        a('s_mov_b64 exec, -1')
        srd(a, 52, 44, 45, 0x100000, WS_P + kidx*0x80000)
        a('s_lshl_b32 s100, s2, 2\ns_add_u32 s100, s100, s49\ns_lshl_b32 s100, s100, 6')
        for i in range(12):
            a(f'v_mov_b32 v{8+i}, ' + (f's{STAMPS[i]}' if i < self.n else '0'))
        a('v_mov_b32 v2, 0\ns_mov_b64 exec, 1')
        for i in range(3):
            a(f'buffer_store_dwordx4 v[{8+4*i}:{11+4*i}], v2, s[52:55], s100 offen offset:{16*i}')
        self.n = 0
PR = Prof()

HDR = open('gated_mix__ssm_conv_s4d__geglu_ffn__prompt.s.ref').read().split('; Override launch')[0]

WS_HF = 0
HF_BYTES = 64*43*2048
WS_WD = 0x600000
WD_BYTES = 16*43*2048
WS_A = 0x800000
A_BYTES = 2048*512*2
WS_G = 0xA00000
G_BYTES = 2048*4

N_CONV = 256
N_G1 = 240
N_AUX = 16
K1_GRID = N_CONV + N_G1 + N_AUX
K1_LDS = 81920
K2_LDS = 65536

LOG2E = 1.4426950408889634
def f2u(x): return '0x%08x' % struct.unpack('<I', struct.pack('<f', x))[0]

class VM:
    def __init__(self, a): self.a = a; self.q = []
    def issue(self, tag): self.q.append(tag)
    def wait(self, tag):
        if tag not in self.q: return
        idx = max(i for i, t in enumerate(self.q) if t == tag)
        n = len(self.q) - 1 - idx
        assert n <= 63, n
        self.a(f's_waitcnt vmcnt({n})')
        self.q = self.q[idx+1:]

class LG(VM):
    def wait(self, tag):
        if tag not in self.q: return
        idx = max(i for i, t in enumerate(self.q) if t == tag)
        n = len(self.q) - 1 - idx
        assert n <= 15, n
        self.a(f's_waitcnt lgkmcnt({n})')
        self.q = self.q[idx+1:]

def srd(a, s, lo, hi, size, off=0):
    if off:
        a(f's_add_u32 s{s}, s{lo}, {off}\ns_addc_u32 s{s+1}, s{hi}, 0')
    else:
        a(f's_mov_b32 s{s}, s{lo}\ns_mov_b32 s{s+1}, s{hi}')
    a(f's_and_b32 s{s+1}, s{s+1}, 0xffff\ns_mov_b32 s{s+2}, {size}\ns_mov_b32 s{s+3}, 0x00020000')

def load_ptrs(a):
    a('''s_load_dwordx16 s[16:31], s[0:1], 0
s_load_dwordx8 s[32:39], s[0:1], 64
s_load_dwordx4 s[40:43], s[0:1], 96
s_load_dwordx2 s[44:45], s[0:1], 112
v_and_b32 v1, 63, v0
v_lshrrev_b32 v2, 6, v0
s_nop 0
v_readfirstlane_b32 s49, v2
s_waitcnt lgkmcnt(0)''')

def dpp_reduce(a, op, regs):
    for m in ('row_shr:1', 'row_shr:2', 'row_shr:4', 'row_shr:8'):
        for r in regs:
            a(f'{op}_dpp v{r}, v{r}, v{r} {m} row_mask:0xf bank_mask:0xf bound_ctrl:0')
    for m, mask in (('row_bcast:15', '0xa'), ('row_bcast:31', '0xc')):
        for r in regs:
            a(f'{op}_dpp v{r}, v{r}, v{r} {m} row_mask:{mask} bank_mask:0xf')

HS_BYTES = 12288
NSLOT = 6
def gemm1_full(a):
    global XB_G
    a('G1:')
    if 'g1' in SKIP: a('s_endpgm')
    PR.stamp(a)
    if P2D:
        a(f'''s_sub_u32 s46, s2, {N_CONV if CF else 0}
s_and_b32 s47, s46, 1
s_lshl_b32 s47, s47, 3
s_bfe_u32 s48, s46, 0x30003
s_add_u32 s47, s47, s48
s_bfe_u32 s48, s46, 0x20001
s_lshl_b32 s48, s48, 2
s_lshr_b32 s50, s46, 6
s_add_u32 s48, s48, s50''')
    else:
        a(f'''s_sub_u32 s46, s2, {N_CONV if CF else 0}
s_and_b32 s47, s46, 7
s_lshl_b32 s47, s47, 1
s_bfe_u32 s48, s46, 0x10003
s_add_u32 s47, s47, s48
s_lshr_b32 s48, s46, 4''')
    srd(a, 52, 16, 17, 2097152)
    a('''s_cmp_lt_u32 s49, 2
s_cselect_b32 s56, s32, s34
s_cselect_b32 s57, s33, s35
s_and_b32 s57, s57, 0xffff
s_mov_b32 s58, 1409024
s_mov_b32 s59, 0x00020000''')
    srd(a, 64, 44, 45, HF_BYTES, WS_HF)
    XL = NSLOT*HS_BYTES
    a(f"""s_lshl_b32 s50, s47, 7
s_lshl_b32 s51, s49, 5
s_add_u32 s50, s50, s51
v_lshrrev_b32 v3, 2, v1
v_add_u32 v2, s50, v3
v_lshlrev_b32 v2, 10, v2
v_and_b32 v4, 3, v1
v_lshl_add_u32 v2, v4, 4, v2
s_movk_i32 s76, 0x4000
s_lshl_b32 s50, s49, 11
s_add_u32 s50, s50, {XL}
v_lshrrev_b32 v5, 1, v4
v_bfe_u32 v6, v3, 2, 1
v_xor_b32 v5, v5, v6
v_and_b32 v4, 1, v4
v_lshlrev_b32 v4, 4, v4
v_lshl_add_u32 v4, v5, 5, v4
v_lshl_add_u32 v4, v3, 6, v4
v_add_u32 v0, s50, v4
v_and_b32 v3, 31, v1
v_lshrrev_b32 v4, 5, v1
v_bfe_u32 v5, v3, 2, 1
v_xor_b32 v4, v4, v5
v_lshlrev_b32 v4, 5, v4
v_lshl_add_u32 v4, v3, 6, v4
v_add_u32 v31, s50, v4""")
    XB = 32
    vm = VM(a); lg = LG(a)
    def xloads(j):
        for q in range(2):
            r = XB + 8*j + 4*q
            a(f'buffer_load_dwordx4 v[{r}:{r+3}], v2, s[52:55], {"0" if q == 0 else "s76"} offen offset:{64*j}')
            vm.issue(('x', j))
    def xtrip(j):
        vm.wait(('x', j))
        for q in range(2):
            r = XB + 8*j + 4*q
            a(f'ds_write_b128 v0, v[{r}:{r+3}] offset:{1024*q}'); lg.issue('xw')
        for tp in range(2):
            r = XB + 8*j + 4*tp
            a(f'ds_read_b128 v[{r}:{r+3}], v1 offset:{16*tp}'); lg.issue(('xf', j))
    xloads(0); xloads(1)
    a("""s_and_b32 s50, s49, 1
s_mul_i32 s50, s50, 192
s_mul_i32 s51, s48, 192""")
    for i in range(3):
        a(f"""v_add_u32 v6, s50, v1
v_add_u32 v6, {64*i}, v6
v_mul_u32_u24 v7, 43691, v6
v_lshrrev_b32 v7, 19, v7
v_mul_u32_u24 v8, 12, v7
v_sub_u32 v8, v6, v8
v_mul_u32_u24 v7, 2752, v7
v_lshlrev_b32 v8, 4, v8
v_add3_u32 v{3+i}, v7, v8, s51""")
    a('s_mul_i32 s51, s49, 3072')
    def dma(j):
        a(f's_mov_b32 s50, {32*j*2752}')
        for i in range(3):
            a(f's_add_u32 m0, s51, {(j % NSLOT)*HS_BYTES + 1024*i}')
            a(f'buffer_load_dwordx4 v{3+i}, s[56:59], s50 offen lds')
            vm.issue(('w', j))
    dma(0); dma(1); xloads(2); xloads(3); dma(2); dma(3); xloads(4); xloads(5); dma(4); xloads(6); xloads(7)
    a(f"""v_and_b32 v8, 15, v1
v_lshrrev_b32 v9, 5, v1
v_lshlrev_b32 v9, 4, v9
v_lshrrev_b32 v10, 2, v8
v_add_u32 v9, v9, v10
v_mul_u32_u24 v9, 192, v9
v_lshrrev_b32 v10, 4, v1
v_and_b32 v10, 1, v10
v_lshlrev_b32 v10, 5, v10
v_and_b32 v11, 3, v8
v_lshlrev_b32 v11, 3, v11
v_add3_u32 v6, v9, v10, v11
v_add_u32 v7, {4*HS_BYTES}, v6
v_mov_b32 v1, v31""")
    ACC = [160+16*i for i in range(6)]
    ops = [(j, tp, tl) for j in range(16) for tp in range(2) for tl in range(6)]
    NB = 6; LEAD = int(os.environ.get('LEAD', '4'))
    def rd(m):
        j, tp, tl = ops[m]
        slot = j % NSLOT
        base = 6 if slot < 4 else 7
        off = (slot % 4)*HS_BYTES + (tl//3)*6144 + (8*tp)*192 + 64*(tl % 3)
        r = 8 + 4*(m % NB)
        if os.environ.get('NORD'): return
        for u in range(2):
            a(f'ds_read_b64_tr_b16 v[{r+2*u}:{r+2*u+1}], v{base} offset:{off + 4*u*192}'); lg.issue(('f', m))
    if GPRIO: a(f's_setprio {GPRIO}')
    xtrip(0)
    vm.wait(('w', 0)); a('s_barrier'); PR.stamp(a)
    issued = 0
    SYNC_AT = 2; XT_AT = 5
    for m in range(len(ops)):
        j, tp, tl = ops[m]
        pos = m % 12
        if pos == 0 and j in (4, 8, 12): PR.stamp(a)
        if pos == SYNC_AT and j + 1 < 16:
            vm.wait(('w', j+1)); a('s_barrier')
            if j + 5 < 16: dma(j+5)
            if (j & 1) == 0 and j + 8 < 16: xloads(j+8); xloads(j+9)
        lim = m + LEAD
        while issued <= lim and issued < len(ops):
            jj = ops[issued][0]
            if jj > j and not (pos >= SYNC_AT): break
            rd(issued); issued += 1
        if pos == XT_AT and j + 1 < 16: xtrip(j+1)
        if pos == 0: lg.wait(('xf', j))
        lg.wait(('f', m))
        xb = XB + 8*j + 4*tp
        r = 8 + 4*(m % NB); c = ACC[tl]
        cc = '0' if m < 6 else f'v[{c}:{c+15}]'
        if not os.environ.get('NOMF'): a(f'v_mfma_f32_32x32x16_bf16 v[{c}:{c+15}], v[{r}:{r+3}], v[{xb}:{xb+3}], {cc}')
    PR.stamp(a)
    if GPRIO: a('s_setprio 0')
    C1 = -2*0.7978845608028654*LOG2E
    a(f'''s_mov_b32 s70, {f2u(C1)}
s_mov_b32 s71, {f2u(C1)}
s_mov_b32 s72, {f2u(0.044715)}
s_mov_b32 s73, {f2u(0.044715)}''')
    a('''s_lshl_b32 s50, s47, 2
s_add_u32 s50, s50, s49
s_mul_i32 s50, s50, 43
s_mul_i32 s51, s48, 3
s_add_u32 s50, s50, s51
s_lshl_b32 s50, s50, 11
v_mbcnt_lo_u32_b32 v1, -1, 0
v_mbcnt_hi_u32_b32 v1, -1, v1
v_lshlrev_b32 v2, 4, v1''')
    for ft in range(3):
        if ft == 1:
            a('s_cmp_eq_u32 s48, 14\ns_cbranch_scc1 G1_DONE')
        g0 = ACC[ft]; u0 = ACC[3+ft]
        ob = 32 + 8*ft
        for i in range(0, 16, 2):
            a(f'''v_cvt_pk_bf16_f32 v8, v{g0+i}, v{g0+i+1}
v_cvt_pk_bf16_f32 v9, v{u0+i}, v{u0+i+1}
v_lshlrev_b32 v10, 16, v8
v_and_b32 v11, 0xffff0000, v8
v_lshlrev_b32 v12, 16, v9
v_and_b32 v13, 0xffff0000, v9
v_pk_mul_f32 v[14:15], v[10:11], v[10:11]
v_pk_fma_f32 v[14:15], v[14:15], s[72:73], 1.0 op_sel_hi:[1,1,0]
v_pk_mul_f32 v[14:15], v[14:15], v[10:11]
v_pk_mul_f32 v[14:15], v[14:15], s[70:71]
v_exp_f32 v14, v14
v_exp_f32 v15, v15
v_pk_add_f32 v[14:15], v[14:15], 1.0 op_sel_hi:[1,0]
v_rcp_f32 v14, v14
v_rcp_f32 v15, v15
v_pk_mul_f32 v[14:15], v[14:15], v[10:11]
v_cvt_pk_bf16_f32 v8, v14, v15
v_lshlrev_b32 v14, 16, v8
v_and_b32 v15, 0xffff0000, v8
v_pk_mul_f32 v[14:15], v[14:15], v[12:13]
v_cvt_pk_bf16_f32 v{ob + i//2}, v14, v15''')
        if ft == 2: a('s_add_u32 s50, s50, 4096')
        for t in range(2):
            a(f'buffer_store_dwordx4 v[{ob+4*t}:{ob+3+4*t}], v2, s[64:67], s50 offen offset:{2048*(ft&1) + 1024*t}')
    a('G1_DONE:')
    a('s_waitcnt vmcnt(0)') if PROF else None
    PR.dump(a, 0)
    a('s_endpgm')

def aux(a):
    a('AUX:')
    if 'aux' in SKIP: a('s_endpgm')
    PR.stamp(a)
    if P2D:
        a(f'''s_sub_u32 s46, s2, {N_CONV if CF else 0}
s_and_b32 s47, s46, 1
s_lshl_b32 s47, s47, 3
s_bfe_u32 s46, s46, 0x30003
s_add_u32 s46, s46, s47
s_lshl_b32 s46, s46, 2
s_add_u32 s46, s46, s49''')
    else:
        a(f's_sub_u32 s46, s2, {N_G1 + (N_CONV if CF else 0)}\ns_lshl_b32 s46, s46, 2\ns_add_u32 s46, s46, s49')
    srd(a, 52, 36, 37, 1409024)
    srd(a, 56, 44, 45, WD_BYTES, WS_WD)
    srd(a, 60, 16, 17, 2097152)
    srd(a, 64, 38, 39, 1024)
    srd(a, 68, 44, 45, G_BYTES, WS_G)
    a('v_lshlrev_b32 v3, 4, v1')
    a('''v_lshrrev_b32 v2, 5, v1
v_lshlrev_b32 v2, 10, v2
v_and_b32 v4, 31, v1
v_lshlrev_b32 v4, 4, v4
v_add_u32 v2, v2, v4
s_lshl_b32 s51, s49, 14
v_and_b32 v8, 15, v1
v_lshrrev_b32 v9, 5, v1
v_lshlrev_b32 v9, 2, v9
v_lshrrev_b32 v10, 2, v8
v_add_u32 v9, v9, v10
v_lshlrev_b32 v9, 9, v9
v_lshrrev_b32 v10, 4, v1
v_and_b32 v10, 1, v10
v_lshlrev_b32 v10, 5, v10
v_and_b32 v11, 3, v8
v_lshlrev_b32 v11, 3, v11
v_add3_u32 v4, v9, v10, v11
v_add_u32 v4, s51, v4
s_mov_b32 s47, s46
AUX_WD:
s_lshr_b32 s48, s47, 1
s_and_b32 s50, s47, 1
s_lshl_b32 s72, s48, 15
s_lshl_b32 s73, s50, 9
s_add_u32 s72, s72, s73''')
    for q in range(16):
        a(f's_add_u32 s73, s72, {2048*q}\ns_add_u32 s74, s51, {1024*q}\ns_mov_b32 m0, s74\nbuffer_load_dwordx4 v2, s[52:55], s73 offen lds')
    a('''s_lshl_b32 s73, s50, 3
s_mul_i32 s73, s73, 43
s_add_u32 s73, s73, s48
s_lshl_b32 s73, s73, 11
s_waitcnt vmcnt(0)''')
    for dg in range(2):
        for dl in range(4):
            dtl = 4*dg + dl
            for t in range(2):
                for hi in range(2):
                    r = 20 + 8*dl + 4*t + 2*hi
                    a(f'ds_read_b64_tr_b16 v[{r}:{r+1}], v4 offset:{(16*t+8*hi)*512 + 64*dtl}')
        a('s_waitcnt lgkmcnt(0)')
        for dl in range(4):
            dtl = 4*dg + dl
            a(f's_add_u32 s74, s73, {dtl*43*2048}')
            for t in range(2):
                r = 20 + 8*dl + 4*t
                a(f'buffer_store_dwordx4 v[{r}:{r+3}], v3, s[56:59], s74 offen offset:{1024*t}')
        a('s_nop 1')
    a('''s_add_u32 s47, s47, 64
s_cmp_lt_u32 s47, 86
s_cbranch_scc1 AUX_WD''')
    a('s_waitcnt vmcnt(0)') if PROF else None
    PR.dump(a, 0)
    a('s_endpgm')

W_CH = 33152
UT0 = 2*W_CH; UT_CH = 7680
PB_OFF = 0; KC_OFF = 4096; KC_SZ = 2688; R_OFF = 9472

def conv(a):
    a('CONV:')
    if 'conv' in SKIP: a('s_endpgm')
    PR.stamp(a)
    if CPL:
        a('s_mov_b32 s46, s3')
    else:
        a('''s_and_b32 s46, s3, 7
s_lshl_b32 s46, s46, 5
s_lshr_b32 s47, s3, 3
s_add_u32 s46, s46, s47''')
    a('''s_lshr_b32 s90, s49, 1
s_and_b32 s91, s49, 1
s_lshl_b32 s47, s46, 1
s_add_u32 s47, s47, s90''')
    srd(a, 52, 16, 17, 2097152)
    srd(a, 56, 18, 19, 131072)
    srd(a, 60, 20, 21, 131072)
    srd(a, 64, 22, 23, 131072)
    srd(a, 68, 24, 25, 131072)
    srd(a, 72, 44, 45, A_BYTES, WS_A)
    a('''s_lshl_b32 s48, s46, 2
s_add_u32 s76, s26, s48
s_addc_u32 s77, s27, 0
s_add_u32 s78, s28, s48
s_addc_u32 s79, s29, 0
s_load_dword s80, s[76:77], 0
s_load_dword s81, s[78:79], 0
v_lshlrev_b32 v2, 10, v0
v_add_u32 v2, s48, v2''')
    a('''s_lshl_b32 s48, s47, 8
v_lshlrev_b32 v3, 2, v1
v_add_u32 v3, s48, v3
buffer_load_dword v24, v3, s[56:59], 0 offen
buffer_load_dword v25, v3, s[60:63], 0 offen
buffer_load_dword v26, v3, s[64:67], 0 offen
buffer_load_dword v27, v3, s[68:71], 0 offen''')
    srd(a, 56, 38, 39, 1024)
    a('''v_lshlrev_b32 v3, 4, v1
s_lshl_b32 s48, s3, 2
s_add_u32 s48, s48, s49
s_lshl_b32 s48, s48, 11
buffer_load_dwordx4 v[120:123], v3, s[56:59], 0 offen
buffer_load_dwordx4 v[124:127], v3, s[52:55], s48 offen
buffer_load_dwordx4 v[128:131], v3, s[52:55], s48 offen offset:1024''')
    def uloads():
        for i in range(8):
            a(f's_mov_b32 s48, {i*256*1024}\nbuffer_load_dword v{112+i}, v2, s[52:55], s48 offen')
    if not ULATE: uloads()
    a(f'''s_mul_i32 s92, s90, {W_CH}
s_mul_i32 s93, s90, {UT_CH}
s_add_u32 s93, s93, {UT0}
s_mul_i32 s50, s91, 1280
s_add_u32 s50, s50, s93
v_lshlrev_b32 v4, 4, v1
v_add_u32 v4, s50, v4
v_mov_b32 v28, 0
v_mov_b32 v29, 0
v_mov_b32 v30, 0
v_mov_b32 v31, 0
ds_write_b128 v4, v[28:31]
v_cmp_gt_u32 vcc, 16, v1
s_and_saveexec_b64 s[82:83], vcc
ds_write_b128 v4, v[28:31] offset:1024
s_mov_b64 exec, s[82:83]''')
    IX = 96
    a(f'''s_lshl_b32 s50, s91, 10
v_lshlrev_b32 v5, 3, v1
v_add_u32 v5, s50, v5
v_sub_u32 v5, 2047, v5
s_movk_i32 s48, {0x4300-128}
s_add_u32 s51, s92, {KC_OFF}''')
    for rp in range(2):
        for e in range(8):
            ix = IX + 8*rp + e
            a(f'''v_subrev_u32 v6, {512*rp + e}, v5
v_cvt_f32_u32 v7, v6
v_cvt_pk_bf16_f32 v7, v7, v7
v_and_b32 v7, 0xffff, v7
v_subrev_u32 v7, s48, v7
v_cmp_gt_u32 vcc, 128, v6
v_cndmask_b32 v{ix}, v7, v6, vcc
v_lshl_add_u32 v{ix}, v{ix}, 2, s51''')
    a(f's_waitcnt vmcnt({3 if ULATE else 11}) lgkmcnt(0)'); PR.stamp(a)
    a(f'''s_cmp_eq_u32 s90, 1
s_cselect_b32 s48, 0, 16
s_lshl_b32 s80, s80, s48
s_and_b32 s80, s80, 0xffff0000
s_lshl_b32 s81, s81, s48
s_and_b32 s81, s81, 0xffff0000
v_mov_b32 v28, s80
v_mul_f32 v28, {f2u(LOG2E)}, v28
v_exp_f32 v28, v28
v_cvt_pk_bf16_f32 v28, v28, v28
v_lshlrev_b32 v28, 16, v28''')
    a('''v_lshlrev_b32 v32, 16, v24
v_and_b32 v33, 0xffff0000, v24
v_lshlrev_b32 v34, 16, v25
v_and_b32 v35, 0xffff0000, v25
v_lshlrev_b32 v36, 16, v26
v_and_b32 v37, 0xffff0000, v26
v_lshlrev_b32 v38, 16, v27
v_and_b32 v39, 0xffff0000, v27
v_max3_f32 v40, |v36|, |v37|, |v38|
v_max_f32 v40, |v39|, v40''')
    dpp_reduce(a, 'v_max_f32', [40])
    a(f'''v_readlane_b32 s50, v40, 63
v_mov_b32 v40, s50
v_cmp_eq_f32 vcc, 0, v40
v_cndmask_b32 v40, v40, 1.0, vcc
v_rcp_f32 v41, v40
v_mul_f32 v42, v40, v28
v_add_f32 v42, v42, v42''')
    for k in range(2):
        la, ai, cr, ci = 32+k, 34+k, 36+k, 38+k
        o = 44 + 4*k
        a(f'''v_mul_f32 v{la}, {f2u(LOG2E)}, v{la}
v_exp_f32 v{la}, v{la}
v_cvt_pk_bf16_f32 v{la}, v{la}, v{la}
v_lshlrev_b32 v{la}, 16, v{la}
v_mul_f32 v{la}, v{la}, v28
v_mul_f32 v{o}, {f2u(-LOG2E)}, v{la}
v_mul_f32 v{ai}, v{ai}, v28
v_mul_f32 v{o+1}, {f2u(1/(2*3.141592653589793))}, v{ai}
v_mul_f32 v{o+2}, v{cr}, v41
v_mul_f32 v{o+3}, v{ci}, v41''')
    a(f'''s_lshl_b32 s50, s91, 11
s_add_u32 s50, s50, s92
v_lshlrev_b32 v4, 5, v1
v_add_u32 v4, s50, v4
ds_write_b128 v4, v[44:47]
ds_write_b128 v4, v[48:51] offset:16''')
    for k in range(2):
        o = 44 + 4*k
        a(f'''v_mul_f32 v8, 0x45000000, v{o}
v_mul_f32 v9, 0x45000000, v{o+1}
v_exp_f32 v8, v8
v_fract_f32 v9, v9
v_cos_f32 v10, v9
v_sin_f32 v11, v9
v_mul_f32 v10, v10, v{o+2}
v_fma_f32 v10, -v11, v{o+3}, v10
v_mul_f32 v{52+k}, v10, v8''')
    a('v_add_f32 v52, v52, v53')
    dpp_reduce(a, 'v_add_f32', [52])
    a('''v_readlane_b32 s94, v52, 63
s_cmp_eq_u32 s91, 0
s_cselect_b32 s94, s94, 0''')
    a(f'''s_lshl_b32 s48, s91, 10
s_add_u32 s48, s48, s50
v_lshrrev_b32 v4, 4, v1
v_lshlrev_b32 v4, 6, v4
v_add_u32 v4, s48, v4
v_and_b32 v5, 15, v1
v_cvt_f32_u32 v6, v5
s_waitcnt lgkmcnt(0)''')
    PR.stamp(a)
    KACC = [192, 196, 200, 204]
    for r in range(192, 208): a(f'v_mov_b32 v{r}, 0')
    YP = [64, 68, 72, 76]
    XP = [80, 84, 88, 92]
    for c in range(4):
        a(f'ds_read_b128 v[{48+4*c}:{51+4*c}], v4 offset:{16*c}')
    a('s_mov_b32 s95, 0\nKG_LOOP:\ns_nop 1')
    def kblock(c, Y, T, E):
        P = 48 + 4*c
        L = [f'v_mul_f32 v{E}, v{P}, v6',
             f'v_mul_f32 v{E+1}, v{P+1}, v6',
             f'v_exp_f32 v{E}, v{E}',
             f'v_fract_f32 v{E+1}, v{E+1}',
             f'v_cos_f32 v{Y}, v{E+1}',
             f'v_sin_f32 v{Y+1}, v{E+1}',
             f'v_pk_mul_f32 v[{Y}:{Y+1}], v[{Y}:{Y+1}], v[{E}:{E+1}] op_sel_hi:[1,0]']
        sq = [f'v_pk_mul_f32 v[{T}:{T+1}], v[{Y}:{Y+1}], v[{Y}:{Y+1}] op_sel:[0,0] op_sel_hi:[0,1]',
              f'v_pk_fma_f32 v[{Y}:{Y+1}], v[{Y}:{Y+1}], v[{Y}:{Y+1}], v[{T}:{T+1}] op_sel:[1,1,0] op_sel_hi:[0,1,1] neg_lo:[1,0,0]']
        for si in range(4):
            L += [f'v_cvt_pk_f16_f32 v{YP[si]+c}, v{Y}, v{Y+1}'] + sq
        for si in range(4):
            L += [f'v_pk_mul_f32 v[{E}:{E+1}], v[{P+2}:{P+3}], v[{Y}:{Y+1}] op_sel:[0,0] op_sel_hi:[0,1]',
                  f'v_pk_fma_f32 v[{E}:{E+1}], v[{P+2}:{P+3}], v[{Y}:{Y+1}], v[{E}:{E+1}] op_sel:[1,1,0] op_sel_hi:[1,0,1] neg_lo:[1,0,0] neg_hi:[1,0,1]']
            if si < 3: L += sq
            L += [f'v_cvt_pk_f16_f32 v{XP[si]+c}, v{E}, v{E+1}']
        return L
    for cp in range(2):
        a('s_waitcnt lgkmcnt(2)')
        La = kblock(2*cp, 8, 10, 12); Lb = kblock(2*cp+1, 14, 16, 18)
        for x, y in zip(La, Lb): a(x); a(y)
        for c in (2*cp, 2*cp+1):
            P = 48 + 4*c
            a(f'ds_read_b128 v[{P}:{P+3}], v4 offset:{256+16*c}')
    for si in range(4):
        k = KACC[si]
        a(f'v_mfma_f32_16x16x32_f16 v[{k}:{k+3}], v[{XP[si]}:{XP[si]+3}], v[{YP[si]}:{YP[si]+3}], v[{k}:{k+3}]')
    a('''v_add_u32 v4, 256, v4
s_add_u32 s95, s95, 1
s_cmp_lt_u32 s95, 4
s_cbranch_scc1 KG_LOOP
s_nop 7''')
    PR.stamp(a)
    if ULATE: uloads()
    a(f'''s_mul_i32 s50, s91, {KC_SZ}
s_add_u32 s50, s50, s51
v_lshrrev_b32 v4, 4, v1
v_lshlrev_b32 v4, 6, v4
v_and_b32 v5, 15, v1
v_add_u32 v4, v4, v5
v_lshl_add_u32 v4, v4, 2, s50
v_cmp_le_u32 s[82:83], 32, v1
v_mov_b32 v8, s50
v_mul_f32 v9, s94, v42
s_waitcnt lgkmcnt(0)''')
    for si in range(4):
        for i in range(4):
            r = KACC[si] + i
            a(f'v_mul_f32 v{r}, v{r}, v42')
    a(f'ds_write_b32 v8, v9 offset:{640*4}')
    for si in range(4):
        base = [0, 128, 256, 384][si]
        for i in range(4):
            r = KACC[si] + i
            if si == 1 and i == 0: a('s_mov_b64 exec, s[82:83]')
            a(f'ds_write_b32 v4, v{r} offset:{(base + 16*i)*4}')
    a('s_mov_b64 exec, -1\ns_waitcnt lgkmcnt(0)\ns_barrier')
    PR.stamp(a)
    for k in range(16):
        a(f'ds_read_b32 v{8+k}, v{IX+k}\nds_read_b32 v{24+k}, v{IX+k} offset:{KC_SZ}')
    a(f'''s_lshl_b32 s50, s91, 11
s_add_u32 s50, s50, s92
s_add_u32 s50, s50, {R_OFF}
v_lshlrev_b32 v4, 4, v1
v_add_u32 v4, s50, v4
v_mov_b32 v40, 0
v_mov_b32 v41, 0
v_mov_b32 v42, 0
v_mov_b32 v43, 0
s_waitcnt lgkmcnt(0)''')
    for k in range(0, 16, 2):
        a(f'''v_pk_add_f32 v[{8+k}:{9+k}], v[{8+k}:{9+k}], v[{24+k}:{25+k}]
v_cvt_pk_bf16_f32 v{48+k//2}, v{8+k}, v{9+k}''')
    a(f'''ds_write_b128 v4, v[48:51]
ds_write_b128 v4, v[52:55] offset:1024
v_mov_b32 v5, s92
ds_write_b128 v5, v[40:43] offset:{R_OFF + 4096}
s_waitcnt lgkmcnt(0)
s_barrier
ds_read_b128 v[8:11], v4
ds_read_b128 v[12:15], v4 offset:16
ds_read_b128 v[24:27], v4 offset:1024
ds_read_b128 v[28:31], v4 offset:1040''')
    a(f'''s_lshl_b32 s50, s91, 7
v_add_u32 v5, s50, v1
v_sub_u32 v5, {258-64}, v5
v_and_b32 v6, 7, v5
v_lshlrev_b32 v5, 7, v5
v_lshl_add_u32 v5, v6, 4, v5
v_add_u32 v5, s92, v5
v_lshl_add_u32 v6, v1, 4, s92
v_cmp_gt_u32 s[82:83], 24, v1
s_cmp_eq_u32 s91, 0
s_cselect_b32 s82, s82, 0
s_cselect_b32 s83, s83, 0
s_waitcnt lgkmcnt(0)
s_barrier
s_mov_b64 exec, s[82:83]
ds_write_b128 v6, v[40:43]
s_mov_b64 exec, -1''')
    for rp in range(2):
        E = 8 + 16*rp; Q0 = 48; Q1 = 54; E1 = 60
        for k in range(6):
            a(f'v_alignbit_b32 v{Q0+k}, v{E+k+1}, v{E+k}, 16')
            a(f'v_alignbit_b32 v{Q1+k}, v{E+k+2}, v{E+k+1}, 16')
            a(f'v_mov_b32 v{E1+k}, v{E+k+1}')
        for rho in range(8):
            src = [E, Q0, E1, Q1, E+2, Q0+2, E1+2, Q1+2][rho]
            a(f'v_xor_b32 v7, {16*(7-rho)}, v5')
            a(f'ds_write_b128 v7, v[{src}:{src+3}] offset:{8192 if rp == 0 else 0}')
    srd(a, 56, 44, 45, G_BYTES, WS_G)
    a('s_waitcnt vmcnt(8)')
    for k in range(2):
        b = 124 + 4*k
        for i in range(4):
            a(f'''v_lshlrev_b32 v8, 16, v{b+i}
v_and_b32 v9, 0xffff0000, v{b+i}
v_lshlrev_b32 v12, 16, v{120+i}
v_and_b32 v13, 0xffff0000, v{120+i}
v_pk_mul_f32 v[8:9], v[8:9], v[12:13]
v_cvt_pk_bf16_f32 v8, v8, v9
v_and_b32 v9, 0xffff0000, v8
v_lshlrev_b32 v8, 16, v8''')
            if i == 0: a('v_pk_add_f32 v[10:11], v[8:9], 0 op_sel_hi:[1,0]')
            else: a('v_pk_add_f32 v[10:11], v[10:11], v[8:9]')
        a(f'v_add_f32 v{14+k}, v10, v11')
    dpp_reduce(a, 'v_add_f32', [14, 15])
    a(f'''v_readlane_b32 s48, v14, 63
v_readlane_b32 s50, v15, 63
v_mov_b32 v8, s48
v_writelane_b32 v8, s50, 1
v_cvt_pk_bf16_f32 v8, v8, v8
v_lshlrev_b32 v8, 16, v8
v_mul_f32 v8, {f2u(-LOG2E)}, v8
v_exp_f32 v8, v8
v_add_f32 v8, 1.0, v8
v_rcp_f32 v8, v8
v_cvt_pk_bf16_f32 v8, v8, v8
v_lshlrev_b32 v8, 16, v8
s_lshl_b32 s48, s3, 2
s_add_u32 s48, s48, s49
s_lshl_b32 s48, s48, 3
v_lshlrev_b32 v9, 2, v1
s_mov_b64 exec, 3
buffer_store_dword v8, v9, s[56:59], s48 offen
s_mov_b64 exec, -1''')
    a(f'''v_lshrrev_b32 v5, 5, v0
v_mul_u32_u24 v5, 80, v5
v_and_b32 v6, 31, v0
v_lshlrev_b32 v6, 1, v6
v_add_u32 v5, v5, v6
v_add_u32 v5, {UT0 + 32*80}, v5
s_waitcnt vmcnt(1)''')
    for i in range(8):
        a(f'ds_write_b16 v5, v{112+i} offset:{640*i}\nds_write_b16_d16_hi v5, v{112+i} offset:{640*i + UT_CH}')
    a(f'''v_and_b32 v8, 31, v1
v_lshrrev_b32 v9, 5, v1
v_lshrrev_b32 v10, 3, v8
v_sub_u32 v10, v10, v9
s_lshl_b32 s50, s91, 1
s_sub_u32 s50, 3, s50
v_add_u32 v10, s50, v10
v_and_b32 v11, 7, v8
v_xor_b32 v11, v11, v10
v_and_b32 v11, 7, v11
v_lshlrev_b32 v10, 7, v10
v_lshl_add_u32 v10, v11, 4, v10
v_add_u32 v4, s92, v10
v_xor_b32 v5, 64, v4
v_mul_u32_u24 v10, 80, v8
v_lshl_add_u32 v10, v9, 4, v10
s_lshl_b32 s50, s91, 5
s_add_u32 s50, s50, s93
s_add_u32 s50, s50, {32*80 - 80*31}
v_add_u32 v6, s50, v10''')
    A0, A1 = 192, 208
    a('s_waitcnt lgkmcnt(0)\ns_barrier')
    PR.stamp(a)
    FS = [64, 80, 96]
    def rd(d):
        f = FS[d % 3]; va = 4 if d % 2 == 0 else 5
        a(f'''ds_read_b128 v[{f}:{f+3}], v{va} offset:{512*d}
ds_read_b128 v[{f+8}:{f+11}], v6 offset:{80*(31-d)}
ds_read_b128 v[{f+12}:{f+15}], v6 offset:{80*(31-d)+2560}
ds_read_b128 v[{f+4}:{f+7}], v{va} offset:{512*d+16384}''')
    rd(0); rd(1)
    for d in range(32):
        if d + 2 < 32: rd(d+2)
        rem = min(2, 31-d)
        a(f's_waitcnt lgkmcnt({4*rem})')
        f = FS[d % 3]
        c0 = '0' if d == 0 else f'v[{A0}:{A0+15}]'; c1 = '0' if d == 0 else f'v[{A1}:{A1+15}]'
        a(f'''v_mfma_f32_32x32x16_bf16 v[{A0}:{A0+15}], v[{f}:{f+3}], v[{f+8}:{f+11}], {c0}
v_mfma_f32_32x32x16_bf16 v[{A1}:{A1+15}], v[{f}:{f+3}], v[{f+12}:{f+15}], {c1}
v_mfma_f32_32x32x16_bf16 v[{A1}:{A1+15}], v[{f+4}:{f+7}], v[{f+8}:{f+11}], v[{A1}:{A1+15}]''')
    PR.stamp(a)
    a('s_nop 15\ns_nop 3\ns_cmp_eq_u32 s91, 0\ns_cbranch_scc1 CV_NOSWAP')
    for i in range(16): a(f'v_swap_b32 v{A0+i}, v{A1+i}')
    a(f'''CV_NOSWAP:
s_lshl_b32 s50, s91, 12
s_add_u32 s50, s50, s92
v_lshl_add_u32 v4, v1, 4, s50
v_xor_b32 v5, 4096, v4
s_barrier''')
    for q in range(4):
        a(f'ds_write_b128 v4, v[{A1+4*q}:{A1+4*q+3}] offset:{1024*q}')
    a(f'''v_and_b32 v8, 31, v1
v_lshrrev_b32 v9, 5, v1
v_mul_u32_u24 v10, 80, v8
v_lshl_add_u32 v10, v9, 3, v10
s_mul_i32 s50, s91, 2560
s_add_u32 s50, s50, s93
s_add_u32 s50, s50, 2560
v_add_u32 v6, s50, v10
v_lshlrev_b32 v10, 6, v8
v_lshl_add_u32 v10, v9, 3, v10
s_lshl_b32 s50, s47, 12
s_lshl_b32 s48, s91, 11
s_add_u32 s50, s50, s48
v_add_u32 v7, s50, v10
v_mov_b32 v2, s81
v_mov_b32 v3, s81''')
    for q in range(4):
        a(f'ds_read_b64 v[{64+2*q}:{65+2*q}], v6 offset:{16*q}')
    a('s_waitcnt lgkmcnt(0)\ns_barrier')
    for q in range(4):
        a(f'ds_read_b128 v[{80+4*q}:{83+4*q}], v5 offset:{1024*q}')
    a('s_waitcnt lgkmcnt(0)')
    for q in range(4):
        ur = 64 + 2*q
        for p in range(2):
            y0 = A0 + 4*q + 2*p; o0 = 80 + 4*q + 2*p
            a(f'''v_pk_add_f32 v[{y0}:{y0+1}], v[{y0}:{y0+1}], v[{o0}:{o0+1}]
v_lshlrev_b32 v8, 16, v{ur+p}
v_and_b32 v9, 0xffff0000, v{ur+p}
v_pk_mul_f32 v[8:9], v[8:9], v[2:3]
v_cvt_pk_bf16_f32 v8, v8, v9
v_cvt_pk_bf16_f32 v10, v{y0}, v{y0+1}
v_and_b32 v9, 0xffff0000, v8
v_lshlrev_b32 v8, 16, v8
v_and_b32 v11, 0xffff0000, v10
v_lshlrev_b32 v10, 16, v10
v_pk_add_f32 v[8:9], v[8:9], v[10:11]
v_cvt_pk_bf16_f32 v{ur+p}, v8, v9''')
        a(f'buffer_store_dwordx2 v[{ur}:{ur+1}], v7, s[72:75], 0 offen offset:{16*q}')
    a('s_waitcnt vmcnt(0)') if PROF else None
    PR.dump(a, 0)
    a('s_endpgm')

def kernel1(a):
    a('.p2align 8')
    a.l.append('k1_kernel:')
    a(f's_cmp_ge_u32 s2, {K1_GRID}\ns_cbranch_scc1 K1_EXIT')
    load_ptrs(a)
    if CF:
        a(f's_mov_b32 s3, s2\ns_cmp_lt_u32 s2, {N_CONV}\ns_cbranch_scc1 CONV')
        if P2D:
            a(f's_sub_u32 s46, s2, {N_CONV}\ns_and_b32 s46, s46, 0xC6\ns_cmp_eq_u32 s46, 0xC6\ns_cbranch_scc1 AUX_J\ns_branch G1_J')
        else:
            a(f's_cmp_lt_u32 s2, {N_CONV+N_G1}\ns_cbranch_scc1 G1_J\ns_branch AUX_J')
    else:
        a(f's_cmp_lt_u32 s2, {N_G1}\ns_cbranch_scc1 G1_J')
        a(f's_cmp_lt_u32 s2, {N_G1+N_AUX}\ns_cbranch_scc1 AUX_J')
        a(f's_sub_u32 s3, s2, {N_G1+N_AUX}\ns_branch CONV')
    a('AUX_J:\ns_branch AUX')
    a('G1_J:\ns_branch G1')
    a('K1_EXIT:\ns_endpgm')
    conv(a); gemm1_full(a); aux(a)

def kernel2(a):
    a('.p2align 8')
    a.l.append('k2_kernel:')
    a('s_cmp_ge_u32 s2, 256\ns_cbranch_scc1 K2_EXIT')
    load_ptrs(a)
    PR.stamp(a)
    a('''s_lshr_b32 s46, s2, 5
s_and_b32 s47, s2, 7
s_lshl_b32 s47, s47, 2
s_bfe_u32 s48, s2, 0x20003
s_add_u32 s47, s47, s48''')
    srd(a, 52, 44, 45, HF_BYTES, WS_HF)
    srd(a, 56, 44, 45, WD_BYTES, WS_WD)
    srd(a, 60, 44, 45, A_BYTES, WS_A)
    srd(a, 64, 44, 45, G_BYTES, WS_G)
    srd(a, 68, 40, 41, A_BYTES)
    a('v_lshlrev_b32 v2, 4, v1')
    a(f'''s_mul_i32 s72, s46, {2*43*2048}
s_add_u32 s73, s72, {43*2048}
s_mul_i32 s74, s47, {2*43*2048}
s_add_u32 s75, s74, {43*2048}''')
    ACC = [192, 208, 224, 240]
    SETS = [32, 64, 96, 128]
    NS = len(SETS)
    NB = 11
    vm = VM(a)
    def loads(i):
        st = SETS[i % NS]
        a(f'''s_add_u32 s76, s49, {4*i}
s_min_u32 s76, s76, 42
s_lshl_b32 s76, s76, 11''')
        for j in range(2):
            a(f's_add_u32 s77, s76, s{72+j}')
            for t in range(2):
                r = st + 8*j + 4*t
                a(f'buffer_load_dwordx4 v[{r}:{r+3}], v2, s[56:59], s77 offen offset:{1024*t}'); vm.issue(i)
        for j in range(2):
            a(f's_add_u32 s77, s76, s{74+j}')
            for t in range(2):
                r = st + 16 + 8*j + 4*t
                a(f'buffer_load_dwordx4 v[{r}:{r+3}], v2, s[52:55], s77 offen offset:{1024*t}'); vm.issue(i)
    for i in range(NS): loads(i)
    a('''s_and_b32 s76, s49, 1
s_lshr_b32 s77, s49, 1
s_lshl_b32 s78, s47, 6
s_lshl_b32 s79, s77, 5
s_add_u32 s78, s78, s79
v_and_b32 v4, 31, v1
v_add_u32 v4, s78, v4
v_lshlrev_b32 v5, 2, v4
v_lshlrev_b32 v3, 1, v4
v_lshlrev_b32 v4, 10, v4
s_lshl_b32 s78, s46, 6
s_lshl_b32 s79, s76, 5
s_add_u32 s78, s78, s79
v_lshrrev_b32 v6, 5, v1
v_lshlrev_b32 v7, 3, v6
v_add_u32 v4, v4, v7
s_lshl_b32 s79, s78, 1
v_add_u32 v4, s79, v4
v_lshlrev_b32 v6, 14, v6
v_add_u32 v3, v3, v6
s_lshl_b32 s78, s78, 12
buffer_load_dword v7, v5, s[64:67], 0 offen''')
    vm.issue('e')
    for q in range(4):
        for e in range(4):
            a(f's_add_u32 s79, s78, {(8*q+e)*4096}\nbuffer_load_ushort v{8+4*q+e}, v3, s[60:63], s79 offen'); vm.issue('e')
    for r in range(192, 256): a(f'v_mov_b32 v{r}, 0')
    for i in range(NB):
        vm.wait(i)
        if i in (0, 4, 8): PR.stamp(a)
        if i == NB-1:
            a('s_cmp_eq_u32 s49, 3\ns_cbranch_scc1 K2_RED')
        st = SETS[i % NS]
        for t in range(2):
            for tj in range(2):
                for dj in range(2):
                    c = ACC[dj + 2*tj]
                    ra = st + 8*dj + 4*t; rb = st + 16 + 8*tj + 4*t
                    a(f'v_mfma_f32_32x32x16_bf16 v[{c}:{c+15}], v[{ra}:{ra+3}], v[{rb}:{rb+3}], v[{c}:{c+15}]')
        if i + NS < NB: loads(i+NS)
    a('K2_RED:\ns_nop 15')
    PR.stamp(a)
    a('s_lshl_b32 s76, s49, 14\nv_add_u32 v24, s76, v2')
    for tl in range(4):
        for q in range(4):
            r = ACC[tl] + 4*q
            a(f'ds_write_b128 v24, v[{r}:{r+3}] offset:{4096*tl + 1024*q}')
    a('''s_waitcnt lgkmcnt(0)
s_barrier
s_lshl_b32 s76, s49, 12
v_add_u32 v24, s76, v2''')
    for q in range(4):
        for wv in range(4):
            r = 64 + 16*wv + 4*q
            a(f'ds_read_b128 v[{r}:{r+3}], v24 offset:{16384*wv + 1024*q}')
    a('''s_waitcnt vmcnt(0)
v_sub_f32 v26, 1.0, v7
v_cvt_pk_bf16_f32 v26, v26, v26
v_lshlrev_b32 v26, 16, v26
v_mov_b32 v27, v26
v_mov_b32 v28, v7
v_mov_b32 v29, v7''')
    for q in range(4):
        a(f's_waitcnt lgkmcnt({4*(3-q)})')
        for p in range(2):
            r0 = 64 + 4*q + 2*p
            a(f'''v_pk_add_f32 v[{r0}:{r0+1}], v[{r0}:{r0+1}], v[{r0+16}:{r0+17}]
v_pk_add_f32 v[{r0+32}:{r0+33}], v[{r0+32}:{r0+33}], v[{r0+48}:{r0+49}]
v_pk_add_f32 v[{r0}:{r0+1}], v[{r0}:{r0+1}], v[{r0+32}:{r0+33}]''')
            a0 = 8 + 4*q + 2*p
            a(f'''v_cvt_pk_bf16_f32 v40, v{r0}, v{r0+1}
v_and_b32 v41, 0xffff0000, v40
v_lshlrev_b32 v40, 16, v40
v_pk_mul_f32 v[40:41], v[40:41], v[26:27]
v_cvt_pk_bf16_f32 v40, v40, v41
v_lshlrev_b32 v42, 16, v{a0}
v_lshlrev_b32 v43, 16, v{a0+1}
v_pk_mul_f32 v[42:43], v[42:43], v[28:29]
v_cvt_pk_bf16_f32 v42, v42, v43
v_and_b32 v41, 0xffff0000, v40
v_lshlrev_b32 v40, 16, v40
v_and_b32 v43, 0xffff0000, v42
v_lshlrev_b32 v42, 16, v42
v_pk_add_f32 v[40:41], v[40:41], v[42:43]
v_cvt_pk_bf16_f32 v{30+p}, v40, v41''')
        a(f'buffer_store_dwordx2 v[30:31], v4, s[68:71], 0 offen offset:{16*q}\ns_nop 1')
    a('s_waitcnt vmcnt(0)') if PROF else None
    PR.dump(a, 1)
    a('K2_EXIT:\ns_endpgm')

def kd(name, vgpr):
    return f'''.amdhsa_kernel {name}
  .amdhsa_next_free_vgpr {vgpr}
  .amdhsa_next_free_sgpr 102
  .amdhsa_accum_offset {vgpr}
  .amdhsa_group_segment_fixed_size 0
  .amdhsa_kernarg_size 120
  .amdhsa_user_sgpr_count 2
  .amdhsa_user_sgpr_kernarg_segment_ptr 1
  .amdhsa_system_sgpr_workgroup_id_x 1
.end_amdhsa_kernel
'''

def main(outp):
    a = Asm()
    a('.globl k1_kernel\n.type k1_kernel,@function')
    kernel1(a)
    a('.globl k2_kernel\n.type k2_kernel,@function')
    kernel2(a)
    body = a.text()
    s = HDR + f'; @launch kernel=k1_kernel grid=({K1_GRID},1,1) block=(256,1,1) lds={K1_LDS}\n'
    s += f'; @launch kernel=k2_kernel grid=(256,1,1) block=(256,1,1) lds={K2_LDS}\n'
    s += '.amdgcn_target "amdgcn-amd-amdhsa--gfx950"\n.text\n' + body
    s += '.section .rodata,"a"\n.p2align 6\n' + kd('k1_kernel', 256) + '.p2align 6\n' + kd('k2_kernel', 256)
    open(outp, 'w').write(s)

main(sys.argv[1] if len(sys.argv) > 1 else 'v4.s')
```

```python
import sys, os, struct
from asmlib import Asm
SKIP = os.environ.get('SKIP', '')
PROF = os.environ.get('PROF', '') == '1'
CF = os.environ.get('CF', '1') == '1'
GPRIO = int(os.environ.get('GPRIO', '0'))
CPL = os.environ.get('CPL', '0') == '1'
P2D = os.environ.get('P2D', '1') == '1'
ULATE = int(os.environ.get('ULATE', '0'))
USPL = {0:(8,0,0,0),1:(0,0,8,0),2:(0,4,4,0),3:(0,2,3,3),4:(0,3,5,0),5:(2,2,2,2)}[ULATE]
WS_P = 0xB00000
STAMPS = [84,85,86,87,88,89,96,97,98,99]
class Prof:
    def __init__(self): self.n = 0
    def stamp(self, a):
        if not PROF: return
        r = STAMPS[self.n]; self.n += 1
        a(f'{"s_memtime" if os.environ.get("PROFC") else "s_memrealtime"} s[100:101]\ns_waitcnt lgkmcnt(0)\ns_mov_b32 s{r}, s100')
    def dump(self, a, kidx):
        if not PROF: return
        self.stamp(a)
        a('s_mov_b64 exec, -1')
        srd(a, 52, 44, 45, 0x100000, WS_P + kidx*0x80000)
        a('s_lshl_b32 s100, s2, 2\ns_add_u32 s100, s100, s49\ns_lshl_b32 s100, s100, 6')
        for i in range(12):
            a(f'v_mov_b32 v{8+i}, ' + (f's{STAMPS[i]}' if i < self.n else '0'))
        a('v_mov_b32 v2, 0\ns_mov_b64 exec, 1')
        for i in range(3):
            a(f'buffer_store_dwordx4 v[{8+4*i}:{11+4*i}], v2, s[52:55], s100 offen offset:{16*i}')
        self.n = 0
PR = Prof()

HDR = open('gated_mix__ssm_conv_s4d__geglu_ffn__prompt.s.ref').read().split('; Override launch')[0]

WS_HF = 0
HF_BYTES = 64*43*2048
WS_WD = 0x600000
WD_BYTES = 16*43*2048
WS_A = 0x800000
A_BYTES = 2048*512*2
WS_G = 0xA00000
G_BYTES = 2048*4

N_CONV = 256
N_G1 = 240
N_AUX = 16
K1_GRID = N_CONV + N_G1 + N_AUX
K1_LDS = 81920
K2_LDS = 65536

LOG2E = 1.4426950408889634
def f2u(x): return '0x%08x' % struct.unpack('<I', struct.pack('<f', x))[0]

class VM:
    def __init__(self, a): self.a = a; self.q = []
    def issue(self, tag): self.q.append(tag)
    def wait(self, tag):
        if tag not in self.q: return
        idx = max(i for i, t in enumerate(self.q) if t == tag)
        n = len(self.q) - 1 - idx
        assert n <= 63, n
        self.a(f's_waitcnt vmcnt({n})')
        self.q = self.q[idx+1:]

class LG(VM):
    def wait(self, tag):
        if tag not in self.q: return
        idx = max(i for i, t in enumerate(self.q) if t == tag)
        n = len(self.q) - 1 - idx
        assert n <= 15, n
        self.a(f's_waitcnt lgkmcnt({n})')
        self.q = self.q[idx+1:]

def srd(a, s, lo, hi, size, off=0):
    if off:
        a(f's_add_u32 s{s}, s{lo}, {off}\ns_addc_u32 s{s+1}, s{hi}, 0')
    else:
        a(f's_mov_b32 s{s}, s{lo}\ns_mov_b32 s{s+1}, s{hi}')
    a(f's_and_b32 s{s+1}, s{s+1}, 0xffff\ns_mov_b32 s{s+2}, {size}\ns_mov_b32 s{s+3}, 0x00020000')

def load_ptrs(a):
    a('''s_load_dwordx16 s[16:31], s[0:1], 0
s_load_dwordx8 s[32:39], s[0:1], 64
s_load_dwordx4 s[40:43], s[0:1], 96
s_load_dwordx2 s[44:45], s[0:1], 112
v_and_b32 v1, 63, v0
v_lshrrev_b32 v2, 6, v0
s_nop 0
v_readfirstlane_b32 s49, v2
s_waitcnt lgkmcnt(0)''')

def dpp_reduce(a, op, regs):
    for m in ('row_shr:1', 'row_shr:2', 'row_shr:4', 'row_shr:8'):
        for r in regs:
            a(f'{op}_dpp v{r}, v{r}, v{r} {m} row_mask:0xf bank_mask:0xf bound_ctrl:0')
    for m, mask in (('row_bcast:15', '0xa'), ('row_bcast:31', '0xc')):
        for r in regs:
            a(f'{op}_dpp v{r}, v{r}, v{r} {m} row_mask:{mask} bank_mask:0xf')

HS_BYTES = 12288
NSLOT = 6
def gemm1_full(a):
    global XB_G
    a('G1:')
    if 'g1' in SKIP: a('s_endpgm')
    PR.stamp(a)
    if P2D:
        a(f'''s_sub_u32 s46, s2, {N_CONV if CF else 0}
s_and_b32 s47, s46, 1
s_lshl_b32 s47, s47, 3
s_bfe_u32 s48, s46, 0x30003
s_add_u32 s47, s47, s48
s_bfe_u32 s48, s46, 0x20001
s_lshl_b32 s48, s48, 2
s_lshr_b32 s50, s46, 6
s_add_u32 s48, s48, s50''')
    else:
        a(f'''s_sub_u32 s46, s2, {N_CONV if CF else 0}
s_and_b32 s47, s46, 7
s_lshl_b32 s47, s47, 1
s_bfe_u32 s48, s46, 0x10003
s_add_u32 s47, s47, s48
s_lshr_b32 s48, s46, 4''')
    srd(a, 52, 16, 17, 2097152)
    a('''s_cmp_lt_u32 s49, 2
s_cselect_b32 s56, s32, s34
s_cselect_b32 s57, s33, s35
s_and_b32 s57, s57, 0xffff
s_mov_b32 s58, 1409024
s_mov_b32 s59, 0x00020000''')
    srd(a, 64, 44, 45, HF_BYTES, WS_HF)
    XL = NSLOT*HS_BYTES
    a(f"""s_lshl_b32 s50, s47, 7
s_lshl_b32 s51, s49, 5
s_add_u32 s50, s50, s51
v_lshrrev_b32 v3, 2, v1
v_add_u32 v2, s50, v3
v_lshlrev_b32 v2, 10, v2
v_and_b32 v4, 3, v1
v_lshl_add_u32 v2, v4, 4, v2
s_movk_i32 s76, 0x4000
s_lshl_b32 s50, s49, 11
s_add_u32 s50, s50, {XL}
v_lshrrev_b32 v5, 1, v4
v_bfe_u32 v6, v3, 2, 1
v_xor_b32 v5, v5, v6
v_and_b32 v4, 1, v4
v_lshlrev_b32 v4, 4, v4
v_lshl_add_u32 v4, v5, 5, v4
v_lshl_add_u32 v4, v3, 6, v4
v_add_u32 v0, s50, v4
v_and_b32 v3, 31, v1
v_lshrrev_b32 v4, 5, v1
v_bfe_u32 v5, v3, 2, 1
v_xor_b32 v4, v4, v5
v_lshlrev_b32 v4, 5, v4
v_lshl_add_u32 v4, v3, 6, v4
v_add_u32 v31, s50, v4""")
    XB = 32
    vm = VM(a); lg = LG(a)
    def xloads(j):
        for q in range(2):
            r = XB + 8*j + 4*q
            a(f'buffer_load_dwordx4 v[{r}:{r+3}], v2, s[52:55], {"0" if q == 0 else "s76"} offen offset:{64*j}')
            vm.issue(('x', j))
    def xtrip(j):
        vm.wait(('x', j))
        for q in range(2):
            r = XB + 8*j + 4*q
            a(f'ds_write_b128 v0, v[{r}:{r+3}] offset:{1024*q}'); lg.issue('xw')
        for tp in range(2):
            r = XB + 8*j + 4*tp
            a(f'ds_read_b128 v[{r}:{r+3}], v1 offset:{16*tp}'); lg.issue(('xf', j))
    xloads(0); xloads(1)
    a("""s_and_b32 s50, s49, 1
s_mul_i32 s50, s50, 192
s_mul_i32 s51, s48, 192""")
    for i in range(3):
        a(f"""v_add_u32 v6, s50, v1
v_add_u32 v6, {64*i}, v6
v_mul_u32_u24 v7, 43691, v6
v_lshrrev_b32 v7, 19, v7
v_mul_u32_u24 v8, 12, v7
v_sub_u32 v8, v6, v8
v_mul_u32_u24 v7, 2752, v7
v_lshlrev_b32 v8, 4, v8
v_add3_u32 v{3+i}, v7, v8, s51""")
    a('s_mul_i32 s51, s49, 3072')
    def dma(j):
        a(f's_mov_b32 s50, {32*j*2752}')
        for i in range(3):
            a(f's_add_u32 m0, s51, {(j % NSLOT)*HS_BYTES + 1024*i}')
            a(f'buffer_load_dwordx4 v{3+i}, s[56:59], s50 offen lds')
            vm.issue(('w', j))
    dma(0); dma(1); xloads(2); xloads(3); dma(2); dma(3); xloads(4); xloads(5); dma(4); xloads(6); xloads(7)
    a(f"""v_and_b32 v8, 15, v1
v_lshrrev_b32 v9, 5, v1
v_lshlrev_b32 v9, 4, v9
v_lshrrev_b32 v10, 2, v8
v_add_u32 v9, v9, v10
v_mul_u32_u24 v9, 192, v9
v_lshrrev_b32 v10, 4, v1
v_and_b32 v10, 1, v10
v_lshlrev_b32 v10, 5, v10
v_and_b32 v11, 3, v8
v_lshlrev_b32 v11, 3, v11
v_add3_u32 v6, v9, v10, v11
v_add_u32 v7, {4*HS_BYTES}, v6
v_mov_b32 v1, v31""")
    ACC = [160+16*i for i in range(6)]
    ops = [(j, tp, tl) for j in range(16) for tp in range(2) for tl in range(6)]
    NB = 6; LEAD = int(os.environ.get('LEAD', '4'))
    def rd(m):
        j, tp, tl = ops[m]
        slot = j % NSLOT
        base = 6 if slot < 4 else 7
        off = (slot % 4)*HS_BYTES + (tl//3)*6144 + (8*tp)*192 + 64*(tl % 3)
        r = 8 + 4*(m % NB)
        if os.environ.get('NORD'): return
        for u in range(2):
            a(f'ds_read_b64_tr_b16 v[{r+2*u}:{r+2*u+1}], v{base} offset:{off + 4*u*192}'); lg.issue(('f', m))
    if GPRIO: a(f's_setprio {GPRIO}')
    xtrip(0)
    vm.wait(('w', 0)); a('s_barrier'); PR.stamp(a)
    issued = 0
    SYNC_AT = 2; XT_AT = 5
    for m in range(len(ops)):
        j, tp, tl = ops[m]
        pos = m % 12
        if pos == 0 and j in (4, 8, 12): PR.stamp(a)
        if pos == SYNC_AT and j + 1 < 16:
            vm.wait(('w', j+1)); a('s_barrier')
            if j + 5 < 16: dma(j+5)
            if (j & 1) == 0 and j + 8 < 16: xloads(j+8); xloads(j+9)
        lim = m + LEAD
        while issued <= lim and issued < len(ops):
            jj = ops[issued][0]
            if jj > j and not (pos >= SYNC_AT): break
            rd(issued); issued += 1
        if pos == XT_AT and j + 1 < 16: xtrip(j+1)
        if pos == 0: lg.wait(('xf', j))
        lg.wait(('f', m))
        xb = XB + 8*j + 4*tp
        r = 8 + 4*(m % NB); c = ACC[tl]
        cc = '0' if m < 6 else f'v[{c}:{c+15}]'
        if not os.environ.get('NOMF'): a(f'v_mfma_f32_32x32x16_bf16 v[{c}:{c+15}], v[{r}:{r+3}], v[{xb}:{xb+3}], {cc}')
    PR.stamp(a)
    if GPRIO: a('s_setprio 0')
    C1 = -2*0.7978845608028654*LOG2E
    a(f'''s_mov_b32 s70, {f2u(C1)}
s_mov_b32 s71, {f2u(C1)}
s_mov_b32 s72, {f2u(0.044715)}
s_mov_b32 s73, {f2u(0.044715)}''')
    a('''s_lshl_b32 s50, s47, 2
s_add_u32 s50, s50, s49
s_mul_i32 s50, s50, 43
s_mul_i32 s51, s48, 3
s_add_u32 s50, s50, s51
s_lshl_b32 s50, s50, 11
v_mbcnt_lo_u32_b32 v1, -1, 0
v_mbcnt_hi_u32_b32 v1, -1, v1
v_lshlrev_b32 v2, 4, v1''')
    for ft in range(3):
        if ft == 1:
            a('s_cmp_eq_u32 s48, 14\ns_cbranch_scc1 G1_DONE')
        g0 = ACC[ft]; u0 = ACC[3+ft]
        ob = 32 + 8*ft
        for i in range(0, 16, 2):
            a(f'''v_cvt_pk_bf16_f32 v8, v{g0+i}, v{g0+i+1}
v_cvt_pk_bf16_f32 v9, v{u0+i}, v{u0+i+1}
v_lshlrev_b32 v10, 16, v8
v_and_b32 v11, 0xffff0000, v8
v_lshlrev_b32 v12, 16, v9
v_and_b32 v13, 0xffff0000, v9
v_pk_mul_f32 v[14:15], v[10:11], v[10:11]
v_pk_fma_f32 v[14:15], v[14:15], s[72:73], 1.0 op_sel_hi:[1,1,0]
v_pk_mul_f32 v[14:15], v[14:15], v[10:11]
v_pk_mul_f32 v[14:15], v[14:15], s[70:71]
v_exp_f32 v14, v14
v_exp_f32 v15, v15
v_pk_add_f32 v[14:15], v[14:15], 1.0 op_sel_hi:[1,0]
v_rcp_f32 v14, v14
v_rcp_f32 v15, v15
v_pk_mul_f32 v[14:15], v[14:15], v[10:11]
v_cvt_pk_bf16_f32 v8, v14, v15
v_lshlrev_b32 v14, 16, v8
v_and_b32 v15, 0xffff0000, v8
v_pk_mul_f32 v[14:15], v[14:15], v[12:13]
v_cvt_pk_bf16_f32 v{ob + i//2}, v14, v15''')
        if ft == 2: a('s_add_u32 s50, s50, 4096')
        for t in range(2):
            a(f'buffer_store_dwordx4 v[{ob+4*t}:{ob+3+4*t}], v2, s[64:67], s50 offen offset:{2048*(ft&1) + 1024*t}')
    a('G1_DONE:')
    a('s_waitcnt vmcnt(0)') if PROF else None
    PR.dump(a, 0)
    a('s_endpgm')

def aux(a):
    a('AUX:')
    if 'aux' in SKIP: a('s_endpgm')
    PR.stamp(a)
    if P2D:
        a(f'''s_sub_u32 s46, s2, {N_CONV if CF else 0}
s_and_b32 s47, s46, 1
s_lshl_b32 s47, s47, 3
s_bfe_u32 s46, s46, 0x30003
s_add_u32 s46, s46, s47
s_lshl_b32 s46, s46, 2
s_add_u32 s46, s46, s49''')
    else:
        a(f's_sub_u32 s46, s2, {N_G1 + (N_CONV if CF else 0)}\ns_lshl_b32 s46, s46, 2\ns_add_u32 s46, s46, s49')
    srd(a, 52, 36, 37, 1409024)
    srd(a, 56, 44, 45, WD_BYTES, WS_WD)
    srd(a, 60, 16, 17, 2097152)
    srd(a, 64, 38, 39, 1024)
    srd(a, 68, 44, 45, G_BYTES, WS_G)
    a('v_lshlrev_b32 v3, 4, v1')
    a('''v_lshrrev_b32 v2, 5, v1
v_lshlrev_b32 v2, 10, v2
v_and_b32 v4, 31, v1
v_lshlrev_b32 v4, 4, v4
v_add_u32 v2, v2, v4
s_lshl_b32 s51, s49, 14
v_and_b32 v8, 15, v1
v_lshrrev_b32 v9, 5, v1
v_lshlrev_b32 v9, 2, v9
v_lshrrev_b32 v10, 2, v8
v_add_u32 v9, v9, v10
v_lshlrev_b32 v9, 9, v9
v_lshrrev_b32 v10, 4, v1
v_and_b32 v10, 1, v10
v_lshlrev_b32 v10, 5, v10
v_and_b32 v11, 3, v8
v_lshlrev_b32 v11, 3, v11
v_add3_u32 v4, v9, v10, v11
v_add_u32 v4, s51, v4
s_mov_b32 s47, s46
AUX_WD:
s_lshr_b32 s48, s47, 1
s_and_b32 s50, s47, 1
s_lshl_b32 s72, s48, 15
s_lshl_b32 s73, s50, 9
s_add_u32 s72, s72, s73''')
    for q in range(16):
        a(f's_add_u32 s73, s72, {2048*q}\ns_add_u32 s74, s51, {1024*q}\ns_mov_b32 m0, s74\nbuffer_load_dwordx4 v2, s[52:55], s73 offen lds')
    a('''s_lshl_b32 s73, s50, 3
s_mul_i32 s73, s73, 43
s_add_u32 s73, s73, s48
s_lshl_b32 s73, s73, 11
s_waitcnt vmcnt(0)''')
    for dg in range(2):
        for dl in range(4):
            dtl = 4*dg + dl
            for t in range(2):
                for hi in range(2):
                    r = 20 + 8*dl + 4*t + 2*hi
                    a(f'ds_read_b64_tr_b16 v[{r}:{r+1}], v4 offset:{(16*t+8*hi)*512 + 64*dtl}')
        a('s_waitcnt lgkmcnt(0)')
        for dl in range(4):
            dtl = 4*dg + dl
            a(f's_add_u32 s74, s73, {dtl*43*2048}')
            for t in range(2):
                r = 20 + 8*dl + 4*t
                a(f'buffer_store_dwordx4 v[{r}:{r+3}], v3, s[56:59], s74 offen offset:{1024*t}')
        a('s_nop 1')
    a('''s_add_u32 s47, s47, 64
s_cmp_lt_u32 s47, 86
s_cbranch_scc1 AUX_WD''')
    a('s_waitcnt vmcnt(0)') if PROF else None
    PR.dump(a, 0)
    a('s_endpgm')

W_CH = 33152
UT0 = 2*W_CH; UT_CH = 7680
PB_OFF = 0; KC_OFF = 4096; KC_SZ = 2688; R_OFF = 9472

def conv(a):
    a('CONV:')
    if 'conv' in SKIP: a('s_endpgm')
    PR.stamp(a)
    if CPL:
        a('s_mov_b32 s46, s3')
    else:
        a('''s_and_b32 s46, s3, 7
s_lshl_b32 s46, s46, 5
s_lshr_b32 s47, s3, 3
s_add_u32 s46, s46, s47''')
    a('''s_lshr_b32 s90, s49, 1
s_and_b32 s91, s49, 1
s_lshl_b32 s47, s46, 1
s_add_u32 s47, s47, s90''')
    srd(a, 52, 16, 17, 2097152)
    srd(a, 56, 18, 19, 131072)
    srd(a, 60, 20, 21, 131072)
    srd(a, 64, 22, 23, 131072)
    srd(a, 68, 24, 25, 131072)
    srd(a, 72, 44, 45, A_BYTES, WS_A)
    a('''s_lshl_b32 s48, s46, 2
s_add_u32 s76, s26, s48
s_addc_u32 s77, s27, 0
s_add_u32 s78, s28, s48
s_addc_u32 s79, s29, 0
s_load_dword s80, s[76:77], 0
s_load_dword s81, s[78:79], 0
v_lshlrev_b32 v2, 10, v0
v_add_u32 v2, s48, v2''')
    a('''s_lshl_b32 s48, s47, 8
v_lshlrev_b32 v3, 2, v1
v_add_u32 v3, s48, v3
buffer_load_dword v24, v3, s[56:59], 0 offen
buffer_load_dword v25, v3, s[60:63], 0 offen
buffer_load_dword v26, v3, s[64:67], 0 offen
buffer_load_dword v27, v3, s[68:71], 0 offen''')
    srd(a, 56, 38, 39, 1024)
    a('''v_lshlrev_b32 v3, 4, v1
s_lshl_b32 s48, s3, 2
s_add_u32 s48, s48, s49
s_lshl_b32 s48, s48, 11
buffer_load_dwordx4 v[120:123], v3, s[56:59], 0 offen
buffer_load_dwordx4 v[124:127], v3, s[52:55], s48 offen
buffer_load_dwordx4 v[128:131], v3, s[52:55], s48 offen offset:1024''')
    ucnt = [0]
    def uloads(ph):
        for i in range(ucnt[0], ucnt[0] + USPL[ph]):
            a(f's_mov_b32 s48, {i*256*1024}\nbuffer_load_dword v{112+i}, v2, s[52:55], s48 offen')
        ucnt[0] += USPL[ph]
    uloads(0)
    a(f'''s_mul_i32 s92, s90, {W_CH}
s_mul_i32 s93, s90, {UT_CH}
s_add_u32 s93, s93, {UT0}
s_mul_i32 s50, s91, 1280
s_add_u32 s50, s50, s93
v_lshlrev_b32 v4, 4, v1
v_add_u32 v4, s50, v4
v_mov_b32 v28, 0
v_mov_b32 v29, 0
v_mov_b32 v30, 0
v_mov_b32 v31, 0
ds_write_b128 v4, v[28:31]
v_cmp_gt_u32 vcc, 16, v1
s_and_saveexec_b64 s[82:83], vcc
ds_write_b128 v4, v[28:31] offset:1024
s_mov_b64 exec, s[82:83]''')
    IX = 96
    a(f'''s_lshl_b32 s50, s91, 10
v_lshlrev_b32 v5, 3, v1
v_add_u32 v5, s50, v5
v_sub_u32 v5, 2047, v5
s_movk_i32 s48, {0x4300-128}
s_add_u32 s51, s92, {KC_OFF}''')
    for rp in range(2):
        for e in range(8):
            ix = IX + 8*rp + e
            a(f'''v_subrev_u32 v6, {512*rp + e}, v5
v_cvt_f32_u32 v7, v6
v_cvt_pk_bf16_f32 v7, v7, v7
v_and_b32 v7, 0xffff, v7
v_subrev_u32 v7, s48, v7
v_cmp_gt_u32 vcc, 128, v6
v_cndmask_b32 v{ix}, v7, v6, vcc
v_lshl_add_u32 v{ix}, v{ix}, 2, s51''')
    a(f's_waitcnt vmcnt({3 + USPL[0]}) lgkmcnt(0)'); PR.stamp(a)
    a(f'''s_cmp_eq_u32 s90, 1
s_cselect_b32 s48, 0, 16
s_lshl_b32 s80, s80, s48
s_and_b32 s80, s80, 0xffff0000
s_lshl_b32 s81, s81, s48
s_and_b32 s81, s81, 0xffff0000
v_mov_b32 v28, s80
v_mul_f32 v28, {f2u(LOG2E)}, v28
v_exp_f32 v28, v28
v_cvt_pk_bf16_f32 v28, v28, v28
v_lshlrev_b32 v28, 16, v28''')
    a('''v_lshlrev_b32 v32, 16, v24
v_and_b32 v33, 0xffff0000, v24
v_lshlrev_b32 v34, 16, v25
v_and_b32 v35, 0xffff0000, v25
v_lshlrev_b32 v36, 16, v26
v_and_b32 v37, 0xffff0000, v26
v_lshlrev_b32 v38, 16, v27
v_and_b32 v39, 0xffff0000, v27
v_max3_f32 v40, |v36|, |v37|, |v38|
v_max_f32 v40, |v39|, v40''')
    dpp_reduce(a, 'v_max_f32', [40])
    a(f'''v_readlane_b32 s50, v40, 63
v_mov_b32 v40, s50
v_cmp_eq_f32 vcc, 0, v40
v_cndmask_b32 v40, v40, 1.0, vcc
v_rcp_f32 v41, v40
v_mul_f32 v42, v40, v28
v_add_f32 v42, v42, v42''')
    for k in range(2):
        la, ai, cr, ci = 32+k, 34+k, 36+k, 38+k
        o = 44 + 4*k
        a(f'''v_mul_f32 v{la}, {f2u(LOG2E)}, v{la}
v_exp_f32 v{la}, v{la}
v_cvt_pk_bf16_f32 v{la}, v{la}, v{la}
v_lshlrev_b32 v{la}, 16, v{la}
v_mul_f32 v{la}, v{la}, v28
v_mul_f32 v{o}, {f2u(-LOG2E)}, v{la}
v_mul_f32 v{ai}, v{ai}, v28
v_mul_f32 v{o+1}, {f2u(1/(2*3.141592653589793))}, v{ai}
v_mul_f32 v{o+2}, v{cr}, v41
v_mul_f32 v{o+3}, v{ci}, v41''')
    a(f'''s_lshl_b32 s50, s91, 11
s_add_u32 s50, s50, s92
v_lshlrev_b32 v4, 5, v1
v_add_u32 v4, s50, v4
ds_write_b128 v4, v[44:47]
ds_write_b128 v4, v[48:51] offset:16''')
    for k in range(2):
        o = 44 + 4*k
        a(f'''v_mul_f32 v8, 0x45000000, v{o}
v_mul_f32 v9, 0x45000000, v{o+1}
v_exp_f32 v8, v8
v_fract_f32 v9, v9
v_cos_f32 v10, v9
v_sin_f32 v11, v9
v_mul_f32 v10, v10, v{o+2}
v_fma_f32 v10, -v11, v{o+3}, v10
v_mul_f32 v{52+k}, v10, v8''')
    a('v_add_f32 v52, v52, v53')
    dpp_reduce(a, 'v_add_f32', [52])
    a('''v_readlane_b32 s94, v52, 63
s_cmp_eq_u32 s91, 0
s_cselect_b32 s94, s94, 0''')
    a(f'''s_lshl_b32 s48, s91, 10
s_add_u32 s48, s48, s50
v_lshrrev_b32 v4, 4, v1
v_lshlrev_b32 v4, 6, v4
v_add_u32 v4, s48, v4
v_and_b32 v5, 15, v1
v_cvt_f32_u32 v6, v5
s_waitcnt lgkmcnt(0)''')
    PR.stamp(a)
    uloads(1)
    KACC = [192, 196, 200, 204]
    for r in range(192, 208): a(f'v_mov_b32 v{r}, 0')
    YP = [64, 68, 72, 76]
    XP = [80, 84, 88, 92]
    for c in range(4):
        a(f'ds_read_b128 v[{48+4*c}:{51+4*c}], v4 offset:{16*c}')
    a('s_mov_b32 s95, 0\nKG_LOOP:\ns_nop 1')
    def kblock(c, Y, T, E):
        P = 48 + 4*c
        L = [f'v_mul_f32 v{E}, v{P}, v6',
             f'v_mul_f32 v{E+1}, v{P+1}, v6',
             f'v_exp_f32 v{E}, v{E}',
             f'v_fract_f32 v{E+1}, v{E+1}',
             f'v_cos_f32 v{Y}, v{E+1}',
             f'v_sin_f32 v{Y+1}, v{E+1}',
             f'v_pk_mul_f32 v[{Y}:{Y+1}], v[{Y}:{Y+1}], v[{E}:{E+1}] op_sel_hi:[1,0]']
        sq = [f'v_pk_mul_f32 v[{T}:{T+1}], v[{Y}:{Y+1}], v[{Y}:{Y+1}] op_sel:[0,0] op_sel_hi:[0,1]',
              f'v_pk_fma_f32 v[{Y}:{Y+1}], v[{Y}:{Y+1}], v[{Y}:{Y+1}], v[{T}:{T+1}] op_sel:[1,1,0] op_sel_hi:[0,1,1] neg_lo:[1,0,0]']
        for si in range(4):
            L += [f'v_cvt_pk_f16_f32 v{YP[si]+c}, v{Y}, v{Y+1}'] + sq
        for si in range(4):
            L += [f'v_pk_mul_f32 v[{E}:{E+1}], v[{P+2}:{P+3}], v[{Y}:{Y+1}] op_sel:[0,0] op_sel_hi:[0,1]',
                  f'v_pk_fma_f32 v[{E}:{E+1}], v[{P+2}:{P+3}], v[{Y}:{Y+1}], v[{E}:{E+1}] op_sel:[1,1,0] op_sel_hi:[1,0,1] neg_lo:[1,0,0] neg_hi:[1,0,1]']
            if si < 3: L += sq
            L += [f'v_cvt_pk_f16_f32 v{XP[si]+c}, v{E}, v{E+1}']
        return L
    for cp in range(2):
        a('s_waitcnt lgkmcnt(2)')
        La = kblock(2*cp, 8, 10, 12); Lb = kblock(2*cp+1, 14, 16, 18)
        for x, y in zip(La, Lb): a(x); a(y)
        for c in (2*cp, 2*cp+1):
            P = 48 + 4*c
            a(f'ds_read_b128 v[{P}:{P+3}], v4 offset:{256+16*c}')
    for si in range(4):
        k = KACC[si]
        a(f'v_mfma_f32_16x16x32_f16 v[{k}:{k+3}], v[{XP[si]}:{XP[si]+3}], v[{YP[si]}:{YP[si]+3}], v[{k}:{k+3}]')
    a('''v_add_u32 v4, 256, v4
s_add_u32 s95, s95, 1
s_cmp_lt_u32 s95, 4
s_cbranch_scc1 KG_LOOP
s_nop 7''')
    PR.stamp(a)
    uloads(2)
    a(f'''s_mul_i32 s50, s91, {KC_SZ}
s_add_u32 s50, s50, s51
v_lshrrev_b32 v4, 4, v1
v_lshlrev_b32 v4, 6, v4
v_and_b32 v5, 15, v1
v_add_u32 v4, v4, v5
v_lshl_add_u32 v4, v4, 2, s50
v_cmp_le_u32 s[82:83], 32, v1
v_mov_b32 v8, s50
v_mul_f32 v9, s94, v42
s_waitcnt lgkmcnt(0)''')
    for si in range(4):
        for i in range(4):
            r = KACC[si] + i
            a(f'v_mul_f32 v{r}, v{r}, v42')
    a(f'ds_write_b32 v8, v9 offset:{640*4}')
    for si in range(4):
        base = [0, 128, 256, 384][si]
        for i in range(4):
            r = KACC[si] + i
            if si == 1 and i == 0: a('s_mov_b64 exec, s[82:83]')
            a(f'ds_write_b32 v4, v{r} offset:{(base + 16*i)*4}')
    a('s_mov_b64 exec, -1\ns_waitcnt lgkmcnt(0)\ns_barrier')
    PR.stamp(a)
    uloads(3)
    for k in range(16):
        a(f'ds_read_b32 v{8+k}, v{IX+k}\nds_read_b32 v{24+k}, v{IX+k} offset:{KC_SZ}')
    a(f'''s_lshl_b32 s50, s91, 11
s_add_u32 s50, s50, s92
s_add_u32 s50, s50, {R_OFF}
v_lshlrev_b32 v4, 4, v1
v_add_u32 v4, s50, v4
v_mov_b32 v40, 0
v_mov_b32 v41, 0
v_mov_b32 v42, 0
v_mov_b32 v43, 0
s_waitcnt lgkmcnt(0)''')
    for k in range(0, 16, 2):
        a(f'''v_pk_add_f32 v[{8+k}:{9+k}], v[{8+k}:{9+k}], v[{24+k}:{25+k}]
v_cvt_pk_bf16_f32 v{48+k//2}, v{8+k}, v{9+k}''')
    a(f'''ds_write_b128 v4, v[48:51]
ds_write_b128 v4, v[52:55] offset:1024
v_mov_b32 v5, s92
ds_write_b128 v5, v[40:43] offset:{R_OFF + 4096}
s_waitcnt lgkmcnt(0)
s_barrier
ds_read_b128 v[8:11], v4
ds_read_b128 v[12:15], v4 offset:16
ds_read_b128 v[24:27], v4 offset:1024
ds_read_b128 v[28:31], v4 offset:1040''')
    a(f'''s_lshl_b32 s50, s91, 7
v_add_u32 v5, s50, v1
v_sub_u32 v5, {258-64}, v5
v_and_b32 v6, 7, v5
v_lshlrev_b32 v5, 7, v5
v_lshl_add_u32 v5, v6, 4, v5
v_add_u32 v5, s92, v5
v_lshl_add_u32 v6, v1, 4, s92
v_cmp_gt_u32 s[82:83], 24, v1
s_cmp_eq_u32 s91, 0
s_cselect_b32 s82, s82, 0
s_cselect_b32 s83, s83, 0
s_waitcnt lgkmcnt(0)
s_barrier
s_mov_b64 exec, s[82:83]
ds_write_b128 v6, v[40:43]
s_mov_b64 exec, -1''')
    for rp in range(2):
        E = 8 + 16*rp; Q0 = 48; Q1 = 54; E1 = 60
        for k in range(6):
            a(f'v_alignbit_b32 v{Q0+k}, v{E+k+1}, v{E+k}, 16')
            a(f'v_alignbit_b32 v{Q1+k}, v{E+k+2}, v{E+k+1}, 16')
            a(f'v_mov_b32 v{E1+k}, v{E+k+1}')
        for rho in range(8):
            src = [E, Q0, E1, Q1, E+2, Q0+2, E1+2, Q1+2][rho]
            a(f'v_xor_b32 v7, {16*(7-rho)}, v5')
            a(f'ds_write_b128 v7, v[{src}:{src+3}] offset:{8192 if rp == 0 else 0}')
    srd(a, 56, 44, 45, G_BYTES, WS_G)
    a('s_waitcnt vmcnt(8)')
    for k in range(2):
        b = 124 + 4*k
        for i in range(4):
            a(f'''v_lshlrev_b32 v8, 16, v{b+i}
v_and_b32 v9, 0xffff0000, v{b+i}
v_lshlrev_b32 v12, 16, v{120+i}
v_and_b32 v13, 0xffff0000, v{120+i}
v_pk_mul_f32 v[8:9], v[8:9], v[12:13]
v_cvt_pk_bf16_f32 v8, v8, v9
v_and_b32 v9, 0xffff0000, v8
v_lshlrev_b32 v8, 16, v8''')
            if i == 0: a('v_pk_add_f32 v[10:11], v[8:9], 0 op_sel_hi:[1,0]')
            else: a('v_pk_add_f32 v[10:11], v[10:11], v[8:9]')
        a(f'v_add_f32 v{14+k}, v10, v11')
    dpp_reduce(a, 'v_add_f32', [14, 15])
    a(f'''v_readlane_b32 s48, v14, 63
v_readlane_b32 s50, v15, 63
v_mov_b32 v8, s48
v_writelane_b32 v8, s50, 1
v_cvt_pk_bf16_f32 v8, v8, v8
v_lshlrev_b32 v8, 16, v8
v_mul_f32 v8, {f2u(-LOG2E)}, v8
v_exp_f32 v8, v8
v_add_f32 v8, 1.0, v8
v_rcp_f32 v8, v8
v_cvt_pk_bf16_f32 v8, v8, v8
v_lshlrev_b32 v8, 16, v8
s_lshl_b32 s48, s3, 2
s_add_u32 s48, s48, s49
s_lshl_b32 s48, s48, 3
v_lshlrev_b32 v9, 2, v1
s_mov_b64 exec, 3
buffer_store_dword v8, v9, s[56:59], s48 offen
s_mov_b64 exec, -1''')
    a(f'''v_lshrrev_b32 v5, 5, v0
v_mul_u32_u24 v5, 80, v5
v_and_b32 v6, 31, v0
v_lshlrev_b32 v6, 1, v6
v_add_u32 v5, v5, v6
v_add_u32 v5, {UT0 + 32*80}, v5
s_waitcnt vmcnt(1)''')
    for i in range(8):
        a(f'ds_write_b16 v5, v{112+i} offset:{640*i}\nds_write_b16_d16_hi v5, v{112+i} offset:{640*i + UT_CH}')
    a(f'''v_and_b32 v8, 31, v1
v_lshrrev_b32 v9, 5, v1
v_lshrrev_b32 v10, 3, v8
v_sub_u32 v10, v10, v9
s_lshl_b32 s50, s91, 1
s_sub_u32 s50, 3, s50
v_add_u32 v10, s50, v10
v_and_b32 v11, 7, v8
v_xor_b32 v11, v11, v10
v_and_b32 v11, 7, v11
v_lshlrev_b32 v10, 7, v10
v_lshl_add_u32 v10, v11, 4, v10
v_add_u32 v4, s92, v10
v_xor_b32 v5, 64, v4
v_mul_u32_u24 v10, 80, v8
v_lshl_add_u32 v10, v9, 4, v10
s_lshl_b32 s50, s91, 5
s_add_u32 s50, s50, s93
s_add_u32 s50, s50, {32*80 - 80*31}
v_add_u32 v6, s50, v10''')
    A0, A1 = 192, 208
    a('s_waitcnt lgkmcnt(0)\ns_barrier')
    PR.stamp(a)
    FS = [64, 80, 96]
    def rd(d):
        f = FS[d % 3]; va = 4 if d % 2 == 0 else 5
        a(f'''ds_read_b128 v[{f}:{f+3}], v{va} offset:{512*d}
ds_read_b128 v[{f+8}:{f+11}], v6 offset:{80*(31-d)}
ds_read_b128 v[{f+12}:{f+15}], v6 offset:{80*(31-d)+2560}
ds_read_b128 v[{f+4}:{f+7}], v{va} offset:{512*d+16384}''')
    rd(0); rd(1)
    for d in range(32):
        if d + 2 < 32: rd(d+2)
        rem = min(2, 31-d)
        a(f's_waitcnt lgkmcnt({4*rem})')
        f = FS[d % 3]
        c0 = '0' if d == 0 else f'v[{A0}:{A0+15}]'; c1 = '0' if d == 0 else f'v[{A1}:{A1+15}]'
        a(f'''v_mfma_f32_32x32x16_bf16 v[{A0}:{A0+15}], v[{f}:{f+3}], v[{f+8}:{f+11}], {c0}
v_mfma_f32_32x32x16_bf16 v[{A1}:{A1+15}], v[{f}:{f+3}], v[{f+12}:{f+15}], {c1}
v_mfma_f32_32x32x16_bf16 v[{A1}:{A1+15}], v[{f+4}:{f+7}], v[{f+8}:{f+11}], v[{A1}:{A1+15}]''')
    PR.stamp(a)
    a('s_nop 15\ns_nop 3\ns_cmp_eq_u32 s91, 0\ns_cbranch_scc1 CV_NOSWAP')
    for i in range(16): a(f'v_swap_b32 v{A0+i}, v{A1+i}')
    a(f'''CV_NOSWAP:
s_lshl_b32 s50, s91, 12
s_add_u32 s50, s50, s92
v_lshl_add_u32 v4, v1, 4, s50
v_xor_b32 v5, 4096, v4
s_barrier''')
    for q in range(4):
        a(f'ds_write_b128 v4, v[{A1+4*q}:{A1+4*q+3}] offset:{1024*q}')
    a(f'''v_and_b32 v8, 31, v1
v_lshrrev_b32 v9, 5, v1
v_mul_u32_u24 v10, 80, v8
v_lshl_add_u32 v10, v9, 3, v10
s_mul_i32 s50, s91, 2560
s_add_u32 s50, s50, s93
s_add_u32 s50, s50, 2560
v_add_u32 v6, s50, v10
v_lshlrev_b32 v10, 6, v8
v_lshl_add_u32 v10, v9, 3, v10
s_lshl_b32 s50, s47, 12
s_lshl_b32 s48, s91, 11
s_add_u32 s50, s50, s48
v_add_u32 v7, s50, v10
v_mov_b32 v2, s81
v_mov_b32 v3, s81''')
    for q in range(4):
        a(f'ds_read_b64 v[{64+2*q}:{65+2*q}], v6 offset:{16*q}')
    a('s_waitcnt lgkmcnt(0)\ns_barrier')
    for q in range(4):
        a(f'ds_read_b128 v[{80+4*q}:{83+4*q}], v5 offset:{1024*q}')
    a('s_waitcnt lgkmcnt(0)')
    for q in range(4):
        ur = 64 + 2*q
        for p in range(2):
            y0 = A0 + 4*q + 2*p; o0 = 80 + 4*q + 2*p
            a(f'''v_pk_add_f32 v[{y0}:{y0+1}], v[{y0}:{y0+1}], v[{o0}:{o0+1}]
v_lshlrev_b32 v8, 16, v{ur+p}
v_and_b32 v9, 0xffff0000, v{ur+p}
v_pk_mul_f32 v[8:9], v[8:9], v[2:3]
v_cvt_pk_bf16_f32 v8, v8, v9
v_cvt_pk_bf16_f32 v10, v{y0}, v{y0+1}
v_and_b32 v9, 0xffff0000, v8
v_lshlrev_b32 v8, 16, v8
v_and_b32 v11, 0xffff0000, v10
v_lshlrev_b32 v10, 16, v10
v_pk_add_f32 v[8:9], v[8:9], v[10:11]
v_cvt_pk_bf16_f32 v{ur+p}, v8, v9''')
        a(f'buffer_store_dwordx2 v[{ur}:{ur+1}], v7, s[72:75], 0 offen offset:{16*q}')
    a('s_waitcnt vmcnt(0)') if PROF else None
    PR.dump(a, 0)
    a('s_endpgm')

def kernel1(a):
    a('.p2align 8')
    a.l.append('k1_kernel:')
    a(f's_cmp_ge_u32 s2, {K1_GRID}\ns_cbranch_scc1 K1_EXIT')
    load_ptrs(a)
    if CF:
        a(f's_mov_b32 s3, s2\ns_cmp_lt_u32 s2, {N_CONV}\ns_cbranch_scc1 CONV')
        if P2D:
            a(f's_sub_u32 s46, s2, {N_CONV}\ns_and_b32 s46, s46, 0xC6\ns_cmp_eq_u32 s46, 0xC6\ns_cbranch_scc1 AUX_J\ns_branch G1_J')
        else:
            a(f's_cmp_lt_u32 s2, {N_CONV+N_G1}\ns_cbranch_scc1 G1_J\ns_branch AUX_J')
    else:
        a(f's_cmp_lt_u32 s2, {N_G1}\ns_cbranch_scc1 G1_J')
        a(f's_cmp_lt_u32 s2, {N_G1+N_AUX}\ns_cbranch_scc1 AUX_J')
        a(f's_sub_u32 s3, s2, {N_G1+N_AUX}\ns_branch CONV')
    a('AUX_J:\ns_branch AUX')
    a('G1_J:\ns_branch G1')
    a('K1_EXIT:\ns_endpgm')
    conv(a); gemm1_full(a); aux(a)

def kernel2(a):
    a('.p2align 8')
    a.l.append('k2_kernel:')
    a('s_cmp_ge_u32 s2, 256\ns_cbranch_scc1 K2_EXIT')
    load_ptrs(a)
    PR.stamp(a)
    a('''s_lshr_b32 s46, s2, 5
s_and_b32 s47, s2, 7
s_lshl_b32 s47, s47, 2
s_bfe_u32 s48, s2, 0x20003
s_add_u32 s47, s47, s48''')
    srd(a, 52, 44, 45, HF_BYTES, WS_HF)
    srd(a, 56, 44, 45, WD_BYTES, WS_WD)
    srd(a, 60, 44, 45, A_BYTES, WS_A)
    srd(a, 64, 44, 45, G_BYTES, WS_G)
    srd(a, 68, 40, 41, A_BYTES)
    a('v_lshlrev_b32 v2, 4, v1')
    a(f'''s_mul_i32 s72, s46, {2*43*2048}
s_add_u32 s73, s72, {43*2048}
s_mul_i32 s74, s47, {2*43*2048}
s_add_u32 s75, s74, {43*2048}''')
    ACC = [192, 208, 224, 240]
    SETS = [32, 64, 96, 128]
    NS = len(SETS)
    NB = 11
    vm = VM(a)
    def loads(i):
        st = SETS[i % NS]
        a(f'''s_add_u32 s76, s49, {4*i}
s_min_u32 s76, s76, 42
s_lshl_b32 s76, s76, 11''')
        for j in range(2):
            a(f's_add_u32 s77, s76, s{72+j}')
            for t in range(2):
                r = st + 8*j + 4*t
                a(f'buffer_load_dwordx4 v[{r}:{r+3}], v2, s[56:59], s77 offen offset:{1024*t}'); vm.issue(i)
        for j in range(2):
            a(f's_add_u32 s77, s76, s{74+j}')
            for t in range(2):
                r = st + 16 + 8*j + 4*t
                a(f'buffer_load_dwordx4 v[{r}:{r+3}], v2, s[52:55], s77 offen offset:{1024*t}'); vm.issue(i)
    for i in range(NS): loads(i)
    a('''s_and_b32 s76, s49, 1
s_lshr_b32 s77, s49, 1
s_lshl_b32 s78, s47, 6
s_lshl_b32 s79, s77, 5
s_add_u32 s78, s78, s79
v_and_b32 v4, 31, v1
v_add_u32 v4, s78, v4
v_lshlrev_b32 v5, 2, v4
v_lshlrev_b32 v3, 1, v4
v_lshlrev_b32 v4, 10, v4
s_lshl_b32 s78, s46, 6
s_lshl_b32 s79, s76, 5
s_add_u32 s78, s78, s79
v_lshrrev_b32 v6, 5, v1
v_lshlrev_b32 v7, 3, v6
v_add_u32 v4, v4, v7
s_lshl_b32 s79, s78, 1
v_add_u32 v4, s79, v4
v_lshlrev_b32 v6, 14, v6
v_add_u32 v3, v3, v6
s_lshl_b32 s78, s78, 12
buffer_load_dword v7, v5, s[64:67], 0 offen''')
    vm.issue('e')
    for q in range(4):
        for e in range(4):
            a(f's_add_u32 s79, s78, {(8*q+e)*4096}\nbuffer_load_ushort v{8+4*q+e}, v3, s[60:63], s79 offen'); vm.issue('e')
    for r in range(192, 256): a(f'v_mov_b32 v{r}, 0')
    for i in range(NB):
        vm.wait(i)
        if i in (0, 4, 8): PR.stamp(a)
        if i == NB-1:
            a('s_cmp_eq_u32 s49, 3\ns_cbranch_scc1 K2_RED')
        st = SETS[i % NS]
        for t in range(2):
            for tj in range(2):
                for dj in range(2):
                    c = ACC[dj + 2*tj]
                    ra = st + 8*dj + 4*t; rb = st + 16 + 8*tj + 4*t
                    a(f'v_mfma_f32_32x32x16_bf16 v[{c}:{c+15}], v[{ra}:{ra+3}], v[{rb}:{rb+3}], v[{c}:{c+15}]')
        if i + NS < NB: loads(i+NS)
    a('K2_RED:\ns_nop 15')
    PR.stamp(a)
    a('s_lshl_b32 s76, s49, 14\nv_add_u32 v24, s76, v2')
    for tl in range(4):
        for q in range(4):
            r = ACC[tl] + 4*q
            a(f'ds_write_b128 v24, v[{r}:{r+3}] offset:{4096*tl + 1024*q}')
    a('''s_waitcnt lgkmcnt(0)
s_barrier
s_lshl_b32 s76, s49, 12
v_add_u32 v24, s76, v2''')
    for q in range(4):
        for wv in range(4):
            r = 64 + 16*wv + 4*q
            a(f'ds_read_b128 v[{r}:{r+3}], v24 offset:{16384*wv + 1024*q}')
    a('''s_waitcnt vmcnt(0)
v_sub_f32 v26, 1.0, v7
v_cvt_pk_bf16_f32 v26, v26, v26
v_lshlrev_b32 v26, 16, v26
v_mov_b32 v27, v26
v_mov_b32 v28, v7
v_mov_b32 v29, v7''')
    for q in range(4):
        a(f's_waitcnt lgkmcnt({4*(3-q)})')
        for p in range(2):
            r0 = 64 + 4*q + 2*p
            a(f'''v_pk_add_f32 v[{r0}:{r0+1}], v[{r0}:{r0+1}], v[{r0+16}:{r0+17}]
v_pk_add_f32 v[{r0+32}:{r0+33}], v[{r0+32}:{r0+33}], v[{r0+48}:{r0+49}]
v_pk_add_f32 v[{r0}:{r0+1}], v[{r0}:{r0+1}], v[{r0+32}:{r0+33}]''')
            a0 = 8 + 4*q + 2*p
            a(f'''v_cvt_pk_bf16_f32 v40, v{r0}, v{r0+1}
v_and_b32 v41, 0xffff0000, v40
v_lshlrev_b32 v40, 16, v40
v_pk_mul_f32 v[40:41], v[40:41], v[26:27]
v_cvt_pk_bf16_f32 v40, v40, v41
v_lshlrev_b32 v42, 16, v{a0}
v_lshlrev_b32 v43, 16, v{a0+1}
v_pk_mul_f32 v[42:43], v[42:43], v[28:29]
v_cvt_pk_bf16_f32 v42, v42, v43
v_and_b32 v41, 0xffff0000, v40
v_lshlrev_b32 v40, 16, v40
v_and_b32 v43, 0xffff0000, v42
v_lshlrev_b32 v42, 16, v42
v_pk_add_f32 v[40:41], v[40:41], v[42:43]
v_cvt_pk_bf16_f32 v{30+p}, v40, v41''')
        a(f'buffer_store_dwordx2 v[30:31], v4, s[68:71], 0 offen offset:{16*q}\ns_nop 1')
    a('s_waitcnt vmcnt(0)') if PROF else None
    PR.dump(a, 1)
    a('K2_EXIT:\ns_endpgm')

def kd(name, vgpr):
    return f'''.amdhsa_kernel {name}
  .amdhsa_next_free_vgpr {vgpr}
  .amdhsa_next_free_sgpr 102
  .amdhsa_accum_offset {vgpr}
  .amdhsa_group_segment_fixed_size 0
  .amdhsa_kernarg_size 120
  .amdhsa_user_sgpr_count 2
  .amdhsa_user_sgpr_kernarg_segment_ptr 1
  .amdhsa_system_sgpr_workgroup_id_x 1
.end_amdhsa_kernel
'''

def main(outp):
    a = Asm()
    a('.globl k1_kernel\n.type k1_kernel,@function')
    kernel1(a)
    a('.globl k2_kernel\n.type k2_kernel,@function')
    kernel2(a)
    body = a.text()
    s = HDR + f'; @launch kernel=k1_kernel grid=({K1_GRID},1,1) block=(256,1,1) lds={K1_LDS}\n'
    s += f'; @launch kernel=k2_kernel grid=(256,1,1) block=(256,1,1) lds={K2_LDS}\n'
    s += '.amdgcn_target "amdgcn-amd-amdhsa--gfx950"\n.text\n' + body
    s += '.section .rodata,"a"\n.p2align 6\n' + kd('k1_kernel', 256) + '.p2align 6\n' + kd('k2_kernel', 256)
    open(outp, 'w').write(s)

main(sys.argv[1] if len(sys.argv) > 1 else 'v4.s')
```

```python
import sys, os, struct
from asmlib import Asm
SKIP = os.environ.get('SKIP', '')
PROF = os.environ.get('PROF', '') == '1'
CF = os.environ.get('CF', '1') == '1'
GPRIO = int(os.environ.get('GPRIO', '0'))
CPL = os.environ.get('CPL', '0') == '1'
STF = os.environ.get('STF', '')
P2D = os.environ.get('P2D', '1') == '1'
ULATE = int(os.environ.get('ULATE', '0'))
USPL = {0:(8,0,0,0),1:(0,0,8,0),2:(0,4,4,0),3:(0,2,3,3),4:(0,3,5,0),5:(2,2,2,2),9:(0,0,0,0)}[ULATE]
WS_P = 0xB00000
STAMPS = [84,85,86,87,88,89,96,97,98,99]
class Prof:
    def __init__(self): self.n = 0
    def stamp(self, a):
        if not PROF: return
        r = STAMPS[self.n]; self.n += 1
        a(f'{"s_memtime" if os.environ.get("PROFC") else "s_memrealtime"} s[100:101]\ns_waitcnt lgkmcnt(0)\ns_mov_b32 s{r}, s100')
    def dump(self, a, kidx):
        if not PROF: return
        self.stamp(a)
        a('s_mov_b64 exec, -1')
        srd(a, 52, 44, 45, 0x100000, WS_P + kidx*0x80000)
        a('s_lshl_b32 s100, s2, 2\ns_add_u32 s100, s100, s49\ns_lshl_b32 s100, s100, 6')
        for i in range(12):
            a(f'v_mov_b32 v{8+i}, ' + (f's{STAMPS[i]}' if i < self.n else '0'))
        a('v_mov_b32 v2, 0\ns_mov_b64 exec, 1')
        for i in range(3):
            a(f'buffer_store_dwordx4 v[{8+4*i}:{11+4*i}], v2, s[52:55], s100 offen offset:{16*i}')
        self.n = 0
PR = Prof()

HDR = open('gated_mix__ssm_conv_s4d__geglu_ffn__prompt.s.ref').read().split('; Override launch')[0]

WS_HF = 0
HF_BYTES = 64*43*2048
WS_WD = 0x600000
WD_BYTES = 16*43*2048
WS_A = 0x800000
A_BYTES = 2048*512*2
WS_G = 0xA00000
G_BYTES = 2048*4

N_CONV = 256
N_G1 = 240
N_AUX = 16
K1_GRID = N_CONV + N_G1 + N_AUX
K1_LDS = 81920
K2_LDS = 65536

LOG2E = 1.4426950408889634
def f2u(x): return '0x%08x' % struct.unpack('<I', struct.pack('<f', x))[0]

class VM:
    def __init__(self, a): self.a = a; self.q = []
    def issue(self, tag): self.q.append(tag)
    def wait(self, tag):
        if tag not in self.q: return
        idx = max(i for i, t in enumerate(self.q) if t == tag)
        n = len(self.q) - 1 - idx
        assert n <= 63, n
        self.a(f's_waitcnt vmcnt({n})')
        self.q = self.q[idx+1:]

class LG(VM):
    def wait(self, tag):
        if tag not in self.q: return
        idx = max(i for i, t in enumerate(self.q) if t == tag)
        n = len(self.q) - 1 - idx
        assert n <= 15, n
        self.a(f's_waitcnt lgkmcnt({n})')
        self.q = self.q[idx+1:]

def srd(a, s, lo, hi, size, off=0):
    if off:
        a(f's_add_u32 s{s}, s{lo}, {off}\ns_addc_u32 s{s+1}, s{hi}, 0')
    else:
        a(f's_mov_b32 s{s}, s{lo}\ns_mov_b32 s{s+1}, s{hi}')
    a(f's_and_b32 s{s+1}, s{s+1}, 0xffff\ns_mov_b32 s{s+2}, {size}\ns_mov_b32 s{s+3}, 0x00020000')

def load_ptrs(a):
    a('''s_load_dwordx16 s[16:31], s[0:1], 0
s_load_dwordx8 s[32:39], s[0:1], 64
s_load_dwordx4 s[40:43], s[0:1], 96
s_load_dwordx2 s[44:45], s[0:1], 112
v_and_b32 v1, 63, v0
v_lshrrev_b32 v2, 6, v0
s_nop 0
v_readfirstlane_b32 s49, v2
s_waitcnt lgkmcnt(0)''')

def dpp_reduce(a, op, regs):
    for m in ('row_shr:1', 'row_shr:2', 'row_shr:4', 'row_shr:8'):
        for r in regs:
            a(f'{op}_dpp v{r}, v{r}, v{r} {m} row_mask:0xf bank_mask:0xf bound_ctrl:0')
    for m, mask in (('row_bcast:15', '0xa'), ('row_bcast:31', '0xc')):
        for r in regs:
            a(f'{op}_dpp v{r}, v{r}, v{r} {m} row_mask:{mask} bank_mask:0xf')

HS_BYTES = 12288
NSLOT = 6
def gemm1_full(a):
    global XB_G
    a('G1:')
    if 'g1' in SKIP: a('s_endpgm')
    PR.stamp(a)
    if P2D:
        a(f'''s_sub_u32 s46, s2, {N_CONV if CF else 0}
s_and_b32 s47, s46, 1
s_lshl_b32 s47, s47, 3
s_bfe_u32 s48, s46, 0x30003
s_add_u32 s47, s47, s48
s_bfe_u32 s48, s46, 0x20001
s_lshl_b32 s48, s48, 2
s_lshr_b32 s50, s46, 6
s_add_u32 s48, s48, s50''')
    else:
        a(f'''s_sub_u32 s46, s2, {N_CONV if CF else 0}
s_and_b32 s47, s46, 7
s_lshl_b32 s47, s47, 1
s_bfe_u32 s48, s46, 0x10003
s_add_u32 s47, s47, s48
s_lshr_b32 s48, s46, 4''')
    srd(a, 52, 16, 17, 2097152)
    a('''s_cmp_lt_u32 s49, 2
s_cselect_b32 s56, s32, s34
s_cselect_b32 s57, s33, s35
s_and_b32 s57, s57, 0xffff
s_mov_b32 s58, 1409024
s_mov_b32 s59, 0x00020000''')
    srd(a, 64, 44, 45, HF_BYTES, WS_HF)
    XL = NSLOT*HS_BYTES
    a(f"""s_lshl_b32 s50, s47, 7
s_lshl_b32 s51, s49, 5
s_add_u32 s50, s50, s51
v_lshrrev_b32 v3, 2, v1
v_add_u32 v2, s50, v3
v_lshlrev_b32 v2, 10, v2
v_and_b32 v4, 3, v1
v_lshl_add_u32 v2, v4, 4, v2
s_movk_i32 s76, 0x4000
s_lshl_b32 s50, s49, 11
s_add_u32 s50, s50, {XL}
v_lshrrev_b32 v5, 1, v4
v_bfe_u32 v6, v3, 2, 1
v_xor_b32 v5, v5, v6
v_and_b32 v4, 1, v4
v_lshlrev_b32 v4, 4, v4
v_lshl_add_u32 v4, v5, 5, v4
v_lshl_add_u32 v4, v3, 6, v4
v_add_u32 v0, s50, v4
v_and_b32 v3, 31, v1
v_lshrrev_b32 v4, 5, v1
v_bfe_u32 v5, v3, 2, 1
v_xor_b32 v4, v4, v5
v_lshlrev_b32 v4, 5, v4
v_lshl_add_u32 v4, v3, 6, v4
v_add_u32 v31, s50, v4""")
    XB = 32
    vm = VM(a); lg = LG(a)
    def xloads(j):
        for q in range(2):
            r = XB + 8*j + 4*q
            a(f'buffer_load_dwordx4 v[{r}:{r+3}], v2, s[52:55], {"0" if q == 0 else "s76"} offen offset:{64*j}')
            vm.issue(('x', j))
    def xtrip(j):
        vm.wait(('x', j))
        for q in range(2):
            r = XB + 8*j + 4*q
            a(f'ds_write_b128 v0, v[{r}:{r+3}] offset:{1024*q}'); lg.issue('xw')
        for tp in range(2):
            r = XB + 8*j + 4*tp
            a(f'ds_read_b128 v[{r}:{r+3}], v1 offset:{16*tp}'); lg.issue(('xf', j))
    xloads(0); xloads(1)
    a("""s_and_b32 s50, s49, 1
s_mul_i32 s50, s50, 192
s_mul_i32 s51, s48, 192""")
    for i in range(3):
        a(f"""v_add_u32 v6, s50, v1
v_add_u32 v6, {64*i}, v6
v_mul_u32_u24 v7, 43691, v6
v_lshrrev_b32 v7, 19, v7
v_mul_u32_u24 v8, 12, v7
v_sub_u32 v8, v6, v8
v_mul_u32_u24 v7, 2752, v7
v_lshlrev_b32 v8, 4, v8
v_add3_u32 v{3+i}, v7, v8, s51""")
    a('s_mul_i32 s51, s49, 3072')
    def dma(j):
        a(f's_mov_b32 s50, {32*j*2752}')
        for i in range(3):
            a(f's_add_u32 m0, s51, {(j % NSLOT)*HS_BYTES + 1024*i}')
            a(f'buffer_load_dwordx4 v{3+i}, s[56:59], s50 offen lds')
            vm.issue(('w', j))
    dma(0); dma(1); xloads(2); xloads(3); dma(2); dma(3); xloads(4); xloads(5); dma(4); xloads(6); xloads(7)
    a(f"""v_and_b32 v8, 15, v1
v_lshrrev_b32 v9, 5, v1
v_lshlrev_b32 v9, 4, v9
v_lshrrev_b32 v10, 2, v8
v_add_u32 v9, v9, v10
v_mul_u32_u24 v9, 192, v9
v_lshrrev_b32 v10, 4, v1
v_and_b32 v10, 1, v10
v_lshlrev_b32 v10, 5, v10
v_and_b32 v11, 3, v8
v_lshlrev_b32 v11, 3, v11
v_add3_u32 v6, v9, v10, v11
v_add_u32 v7, {4*HS_BYTES}, v6
v_mov_b32 v1, v31""")
    ACC = [160+16*i for i in range(6)]
    ops = [(j, tp, tl) for j in range(16) for tp in range(2) for tl in range(6)]
    NB = 6; LEAD = int(os.environ.get('LEAD', '4'))
    def rd(m):
        j, tp, tl = ops[m]
        slot = j % NSLOT
        base = 6 if slot < 4 else 7
        off = (slot % 4)*HS_BYTES + (tl//3)*6144 + (8*tp)*192 + 64*(tl % 3)
        r = 8 + 4*(m % NB)
        if os.environ.get('NORD'): return
        for u in range(2):
            a(f'ds_read_b64_tr_b16 v[{r+2*u}:{r+2*u+1}], v{base} offset:{off + 4*u*192}'); lg.issue(('f', m))
    if GPRIO: a(f's_setprio {GPRIO}')
    xtrip(0)
    vm.wait(('w', 0)); a('s_barrier'); PR.stamp(a)
    issued = 0
    SYNC_AT = 2; XT_AT = 5
    for m in range(len(ops)):
        j, tp, tl = ops[m]
        pos = m % 12
        if pos == 0 and j in (4, 8, 12): PR.stamp(a)
        if pos == SYNC_AT and j + 1 < 16:
            vm.wait(('w', j+1)); a('s_barrier')
            if j + 5 < 16: dma(j+5)
            if (j & 1) == 0 and j + 8 < 16: xloads(j+8); xloads(j+9)
        lim = m + LEAD
        while issued <= lim and issued < len(ops):
            jj = ops[issued][0]
            if jj > j and not (pos >= SYNC_AT): break
            rd(issued); issued += 1
        if pos == XT_AT and j + 1 < 16: xtrip(j+1)
        if pos == 0: lg.wait(('xf', j))
        lg.wait(('f', m))
        xb = XB + 8*j + 4*tp
        r = 8 + 4*(m % NB); c = ACC[tl]
        cc = '0' if m < 6 else f'v[{c}:{c+15}]'
        if not os.environ.get('NOMF'): a(f'v_mfma_f32_32x32x16_bf16 v[{c}:{c+15}], v[{r}:{r+3}], v[{xb}:{xb+3}], {cc}')
    PR.stamp(a)
    if GPRIO: a('s_setprio 0')
    C1 = -2*0.7978845608028654*LOG2E
    a(f'''s_mov_b32 s70, {f2u(C1)}
s_mov_b32 s71, {f2u(C1)}
s_mov_b32 s72, {f2u(0.044715)}
s_mov_b32 s73, {f2u(0.044715)}''')
    a('''s_lshl_b32 s50, s47, 2
s_add_u32 s50, s50, s49
s_mul_i32 s50, s50, 43
s_mul_i32 s51, s48, 3
s_add_u32 s50, s50, s51
s_lshl_b32 s50, s50, 11
v_mbcnt_lo_u32_b32 v1, -1, 0
v_mbcnt_hi_u32_b32 v1, -1, v1
v_lshlrev_b32 v2, 4, v1''')
    for ft in range(3):
        if ft == 1:
            a('s_cmp_eq_u32 s48, 14\ns_cbranch_scc1 G1_DONE')
        g0 = ACC[ft]; u0 = ACC[3+ft]
        ob = 32 + 8*ft
        for i in range(0, 16, 2):
            a(f'''v_cvt_pk_bf16_f32 v8, v{g0+i}, v{g0+i+1}
v_cvt_pk_bf16_f32 v9, v{u0+i}, v{u0+i+1}
v_lshlrev_b32 v10, 16, v8
v_and_b32 v11, 0xffff0000, v8
v_lshlrev_b32 v12, 16, v9
v_and_b32 v13, 0xffff0000, v9
v_pk_mul_f32 v[14:15], v[10:11], v[10:11]
v_pk_fma_f32 v[14:15], v[14:15], s[72:73], 1.0 op_sel_hi:[1,1,0]
v_pk_mul_f32 v[14:15], v[14:15], v[10:11]
v_pk_mul_f32 v[14:15], v[14:15], s[70:71]
v_exp_f32 v14, v14
v_exp_f32 v15, v15
v_pk_add_f32 v[14:15], v[14:15], 1.0 op_sel_hi:[1,0]
v_rcp_f32 v14, v14
v_rcp_f32 v15, v15
v_pk_mul_f32 v[14:15], v[14:15], v[10:11]
v_cvt_pk_bf16_f32 v8, v14, v15
v_lshlrev_b32 v14, 16, v8
v_and_b32 v15, 0xffff0000, v8
v_pk_mul_f32 v[14:15], v[14:15], v[12:13]
v_cvt_pk_bf16_f32 v{ob + i//2}, v14, v15''')
        if ft == 2: a('s_add_u32 s50, s50, 4096')
        for t in range(2):
            a(f'buffer_store_dwordx4 v[{ob+4*t}:{ob+3+4*t}], v2, s[64:67], s50 offen offset:{2048*(ft&1) + 1024*t} {STF}')
    a('G1_DONE:')
    a('s_waitcnt vmcnt(0)') if PROF else None
    PR.dump(a, 0)
    a('s_endpgm')

def aux(a):
    a('AUX:')
    if 'aux' in SKIP: a('s_endpgm')
    PR.stamp(a)
    if P2D:
        a(f'''s_sub_u32 s46, s2, {N_CONV if CF else 0}
s_and_b32 s47, s46, 1
s_lshl_b32 s47, s47, 3
s_bfe_u32 s46, s46, 0x30003
s_add_u32 s46, s46, s47
s_lshl_b32 s46, s46, 2
s_add_u32 s46, s46, s49''')
    else:
        a(f's_sub_u32 s46, s2, {N_G1 + (N_CONV if CF else 0)}\ns_lshl_b32 s46, s46, 2\ns_add_u32 s46, s46, s49')
    srd(a, 52, 36, 37, 1409024)
    srd(a, 56, 44, 45, WD_BYTES, WS_WD)
    srd(a, 60, 16, 17, 2097152)
    srd(a, 64, 38, 39, 1024)
    srd(a, 68, 44, 45, G_BYTES, WS_G)
    a('v_lshlrev_b32 v3, 4, v1')
    a('''v_lshrrev_b32 v2, 5, v1
v_lshlrev_b32 v2, 10, v2
v_and_b32 v4, 31, v1
v_lshlrev_b32 v4, 4, v4
v_add_u32 v2, v2, v4
s_lshl_b32 s51, s49, 14
v_and_b32 v8, 15, v1
v_lshrrev_b32 v9, 5, v1
v_lshlrev_b32 v9, 2, v9
v_lshrrev_b32 v10, 2, v8
v_add_u32 v9, v9, v10
v_lshlrev_b32 v9, 9, v9
v_lshrrev_b32 v10, 4, v1
v_and_b32 v10, 1, v10
v_lshlrev_b32 v10, 5, v10
v_and_b32 v11, 3, v8
v_lshlrev_b32 v11, 3, v11
v_add3_u32 v4, v9, v10, v11
v_add_u32 v4, s51, v4
s_mov_b32 s47, s46
AUX_WD:
s_lshr_b32 s48, s47, 1
s_and_b32 s50, s47, 1
s_lshl_b32 s72, s48, 15
s_lshl_b32 s73, s50, 9
s_add_u32 s72, s72, s73''')
    for q in range(16):
        a(f's_add_u32 s73, s72, {2048*q}\ns_add_u32 s74, s51, {1024*q}\ns_mov_b32 m0, s74\nbuffer_load_dwordx4 v2, s[52:55], s73 offen lds')
    a('''s_lshl_b32 s73, s50, 3
s_mul_i32 s73, s73, 43
s_add_u32 s73, s73, s48
s_lshl_b32 s73, s73, 11
s_waitcnt vmcnt(0)''')
    for dg in range(2):
        for dl in range(4):
            dtl = 4*dg + dl
            for t in range(2):
                for hi in range(2):
                    r = 20 + 8*dl + 4*t + 2*hi
                    a(f'ds_read_b64_tr_b16 v[{r}:{r+1}], v4 offset:{(16*t+8*hi)*512 + 64*dtl}')
        a('s_waitcnt lgkmcnt(0)')
        for dl in range(4):
            dtl = 4*dg + dl
            a(f's_add_u32 s74, s73, {dtl*43*2048}')
            for t in range(2):
                r = 20 + 8*dl + 4*t
                a(f'buffer_store_dwordx4 v[{r}:{r+3}], v3, s[56:59], s74 offen offset:{1024*t} {STF}')
        a('s_nop 1')
    a('''s_add_u32 s47, s47, 64
s_cmp_lt_u32 s47, 86
s_cbranch_scc1 AUX_WD''')
    a('s_waitcnt vmcnt(0)') if PROF else None
    PR.dump(a, 0)
    a('s_endpgm')

W_CH = 33152
UT0 = 2*W_CH; UT_CH = 7680
PB_OFF = 0; KC_OFF = 4096; KC_SZ = 2688; R_OFF = 9472

def conv(a):
    a('CONV:')
    if 'conv' in SKIP: a('s_endpgm')
    PR.stamp(a)
    if CPL:
        a('s_mov_b32 s46, s3')
    else:
        a('''s_and_b32 s46, s3, 7
s_lshl_b32 s46, s46, 5
s_lshr_b32 s47, s3, 3
s_add_u32 s46, s46, s47''')
    a('''s_lshr_b32 s90, s49, 1
s_and_b32 s91, s49, 1
s_lshl_b32 s47, s46, 1
s_add_u32 s47, s47, s90''')
    srd(a, 52, 16, 17, 2097152)
    srd(a, 56, 18, 19, 131072)
    srd(a, 60, 20, 21, 131072)
    srd(a, 64, 22, 23, 131072)
    srd(a, 68, 24, 25, 131072)
    srd(a, 72, 44, 45, A_BYTES, WS_A)
    a('''s_lshl_b32 s48, s46, 2
s_add_u32 s76, s26, s48
s_addc_u32 s77, s27, 0
s_add_u32 s78, s28, s48
s_addc_u32 s79, s29, 0
s_load_dword s80, s[76:77], 0
s_load_dword s81, s[78:79], 0
v_lshlrev_b32 v2, 10, v0
v_add_u32 v2, s48, v2''')
    a('''s_lshl_b32 s48, s47, 8
v_lshlrev_b32 v3, 2, v1
v_add_u32 v3, s48, v3
buffer_load_dword v24, v3, s[56:59], 0 offen
buffer_load_dword v25, v3, s[60:63], 0 offen
buffer_load_dword v26, v3, s[64:67], 0 offen
buffer_load_dword v27, v3, s[68:71], 0 offen''')
    srd(a, 56, 38, 39, 1024)
    a('''v_lshlrev_b32 v3, 4, v1
s_lshl_b32 s48, s3, 2
s_add_u32 s48, s48, s49
s_lshl_b32 s48, s48, 11
buffer_load_dwordx4 v[120:123], v3, s[56:59], 0 offen
buffer_load_dwordx4 v[124:127], v3, s[52:55], s48 offen
buffer_load_dwordx4 v[128:131], v3, s[52:55], s48 offen offset:1024''')
    ucnt = [0]
    def uloads(ph):
        for i in range(ucnt[0], ucnt[0] + USPL[ph]):
            a(f's_mov_b32 s48, {i*256*1024}\nbuffer_load_dword v{112+i}, v2, s[52:55], s48 offen')
        ucnt[0] += USPL[ph]
    uloads(0)
    a(f'''s_mul_i32 s92, s90, {W_CH}
s_mul_i32 s93, s90, {UT_CH}
s_add_u32 s93, s93, {UT0}
s_mul_i32 s50, s91, 1280
s_add_u32 s50, s50, s93
v_lshlrev_b32 v4, 4, v1
v_add_u32 v4, s50, v4
v_mov_b32 v28, 0
v_mov_b32 v29, 0
v_mov_b32 v30, 0
v_mov_b32 v31, 0
ds_write_b128 v4, v[28:31]
v_cmp_gt_u32 vcc, 16, v1
s_and_saveexec_b64 s[82:83], vcc
ds_write_b128 v4, v[28:31] offset:1024
s_mov_b64 exec, s[82:83]''')
    IX = 96
    a(f'''s_lshl_b32 s50, s91, 10
v_lshlrev_b32 v5, 3, v1
v_add_u32 v5, s50, v5
v_sub_u32 v5, 2047, v5
s_movk_i32 s48, {0x4300-128}
s_add_u32 s51, s92, {KC_OFF}''')
    for rp in range(2):
        for e in range(8):
            ix = IX + 8*rp + e
            a(f'''v_subrev_u32 v6, {512*rp + e}, v5
v_cvt_f32_u32 v7, v6
v_cvt_pk_bf16_f32 v7, v7, v7
v_and_b32 v7, 0xffff, v7
v_subrev_u32 v7, s48, v7
v_cmp_gt_u32 vcc, 128, v6
v_cndmask_b32 v{ix}, v7, v6, vcc
v_lshl_add_u32 v{ix}, v{ix}, 2, s51''')
    a(f's_waitcnt vmcnt({3 + USPL[0]}) lgkmcnt(0)'); PR.stamp(a)
    a(f'''s_cmp_eq_u32 s90, 1
s_cselect_b32 s48, 0, 16
s_lshl_b32 s80, s80, s48
s_and_b32 s80, s80, 0xffff0000
s_lshl_b32 s81, s81, s48
s_and_b32 s81, s81, 0xffff0000
v_mov_b32 v28, s80
v_mul_f32 v28, {f2u(LOG2E)}, v28
v_exp_f32 v28, v28
v_cvt_pk_bf16_f32 v28, v28, v28
v_lshlrev_b32 v28, 16, v28''')
    a('''v_lshlrev_b32 v32, 16, v24
v_and_b32 v33, 0xffff0000, v24
v_lshlrev_b32 v34, 16, v25
v_and_b32 v35, 0xffff0000, v25
v_lshlrev_b32 v36, 16, v26
v_and_b32 v37, 0xffff0000, v26
v_lshlrev_b32 v38, 16, v27
v_and_b32 v39, 0xffff0000, v27
v_max3_f32 v40, |v36|, |v37|, |v38|
v_max_f32 v40, |v39|, v40''')
    dpp_reduce(a, 'v_max_f32', [40])
    a(f'''v_readlane_b32 s50, v40, 63
v_mov_b32 v40, s50
v_cmp_eq_f32 vcc, 0, v40
v_cndmask_b32 v40, v40, 1.0, vcc
v_rcp_f32 v41, v40
v_mul_f32 v42, v40, v28
v_add_f32 v42, v42, v42''')
    for k in range(2):
        la, ai, cr, ci = 32+k, 34+k, 36+k, 38+k
        o = 44 + 4*k
        a(f'''v_mul_f32 v{la}, {f2u(LOG2E)}, v{la}
v_exp_f32 v{la}, v{la}
v_cvt_pk_bf16_f32 v{la}, v{la}, v{la}
v_lshlrev_b32 v{la}, 16, v{la}
v_mul_f32 v{la}, v{la}, v28
v_mul_f32 v{o}, {f2u(-LOG2E)}, v{la}
v_mul_f32 v{ai}, v{ai}, v28
v_mul_f32 v{o+1}, {f2u(1/(2*3.141592653589793))}, v{ai}
v_mul_f32 v{o+2}, v{cr}, v41
v_mul_f32 v{o+3}, v{ci}, v41''')
    a(f'''s_lshl_b32 s50, s91, 11
s_add_u32 s50, s50, s92
v_lshlrev_b32 v4, 5, v1
v_add_u32 v4, s50, v4
ds_write_b128 v4, v[44:47]
ds_write_b128 v4, v[48:51] offset:16''')
    for k in range(2):
        o = 44 + 4*k
        a(f'''v_mul_f32 v8, 0x45000000, v{o}
v_mul_f32 v9, 0x45000000, v{o+1}
v_exp_f32 v8, v8
v_fract_f32 v9, v9
v_cos_f32 v10, v9
v_sin_f32 v11, v9
v_mul_f32 v10, v10, v{o+2}
v_fma_f32 v10, -v11, v{o+3}, v10
v_mul_f32 v{52+k}, v10, v8''')
    a('v_add_f32 v52, v52, v53')
    dpp_reduce(a, 'v_add_f32', [52])
    a('''v_readlane_b32 s94, v52, 63
s_cmp_eq_u32 s91, 0
s_cselect_b32 s94, s94, 0''')
    a(f'''s_lshl_b32 s48, s91, 10
s_add_u32 s48, s48, s50
v_lshrrev_b32 v4, 4, v1
v_lshlrev_b32 v4, 6, v4
v_add_u32 v4, s48, v4
v_and_b32 v5, 15, v1
v_cvt_f32_u32 v6, v5
s_waitcnt lgkmcnt(0)''')
    PR.stamp(a)
    uloads(1)
    KACC = [192, 196, 200, 204]
    for r in range(192, 208): a(f'v_mov_b32 v{r}, 0')
    YP = [64, 68, 72, 76]
    XP = [80, 84, 88, 92]
    for c in range(4):
        a(f'ds_read_b128 v[{48+4*c}:{51+4*c}], v4 offset:{16*c}')
    a('s_mov_b32 s95, 0\nKG_LOOP:\ns_nop 1')
    def kblock(c, Y, T, E):
        P = 48 + 4*c
        L = [f'v_mul_f32 v{E}, v{P}, v6',
             f'v_mul_f32 v{E+1}, v{P+1}, v6',
             f'v_exp_f32 v{E}, v{E}',
             f'v_fract_f32 v{E+1}, v{E+1}',
             f'v_cos_f32 v{Y}, v{E+1}',
             f'v_sin_f32 v{Y+1}, v{E+1}',
             f'v_pk_mul_f32 v[{Y}:{Y+1}], v[{Y}:{Y+1}], v[{E}:{E+1}] op_sel_hi:[1,0]']
        sq = [f'v_pk_mul_f32 v[{T}:{T+1}], v[{Y}:{Y+1}], v[{Y}:{Y+1}] op_sel:[0,0] op_sel_hi:[0,1]',
              f'v_pk_fma_f32 v[{Y}:{Y+1}], v[{Y}:{Y+1}], v[{Y}:{Y+1}], v[{T}:{T+1}] op_sel:[1,1,0] op_sel_hi:[0,1,1] neg_lo:[1,0,0]']
        for si in range(4):
            L += [f'v_cvt_pk_f16_f32 v{YP[si]+c}, v{Y}, v{Y+1}'] + sq
        for si in range(4):
            L += [f'v_pk_mul_f32 v[{E}:{E+1}], v[{P+2}:{P+3}], v[{Y}:{Y+1}] op_sel:[0,0] op_sel_hi:[0,1]',
                  f'v_pk_fma_f32 v[{E}:{E+1}], v[{P+2}:{P+3}], v[{Y}:{Y+1}], v[{E}:{E+1}] op_sel:[1,1,0] op_sel_hi:[1,0,1] neg_lo:[1,0,0] neg_hi:[1,0,1]']
            if si < 3: L += sq
            L += [f'v_cvt_pk_f16_f32 v{XP[si]+c}, v{E}, v{E+1}']
        return L
    for cp in range(2):
        a('s_waitcnt lgkmcnt(2)')
        La = kblock(2*cp, 8, 10, 12); Lb = kblock(2*cp+1, 14, 16, 18)
        for x, y in zip(La, Lb): a(x); a(y)
        for c in (2*cp, 2*cp+1):
            P = 48 + 4*c
            a(f'ds_read_b128 v[{P}:{P+3}], v4 offset:{256+16*c}')
    for si in range(4):
        k = KACC[si]
        a(f'v_mfma_f32_16x16x32_f16 v[{k}:{k+3}], v[{XP[si]}:{XP[si]+3}], v[{YP[si]}:{YP[si]+3}], v[{k}:{k+3}]')
    a('''v_add_u32 v4, 256, v4
s_add_u32 s95, s95, 1
s_cmp_lt_u32 s95, 4
s_cbranch_scc1 KG_LOOP
s_nop 7''')
    PR.stamp(a)
    uloads(2)
    a(f'''s_mul_i32 s50, s91, {KC_SZ}
s_add_u32 s50, s50, s51
v_lshrrev_b32 v4, 4, v1
v_lshlrev_b32 v4, 6, v4
v_and_b32 v5, 15, v1
v_add_u32 v4, v4, v5
v_lshl_add_u32 v4, v4, 2, s50
v_cmp_le_u32 s[82:83], 32, v1
v_mov_b32 v8, s50
v_mul_f32 v9, s94, v42
s_waitcnt lgkmcnt(0)''')
    for si in range(4):
        for i in range(4):
            r = KACC[si] + i
            a(f'v_mul_f32 v{r}, v{r}, v42')
    a(f'ds_write_b32 v8, v9 offset:{640*4}')
    for si in range(4):
        base = [0, 128, 256, 384][si]
        for i in range(4):
            r = KACC[si] + i
            if si == 1 and i == 0: a('s_mov_b64 exec, s[82:83]')
            a(f'ds_write_b32 v4, v{r} offset:{(base + 16*i)*4}')
    a('s_mov_b64 exec, -1\ns_waitcnt lgkmcnt(0)\ns_barrier')
    PR.stamp(a)
    uloads(3)
    for k in range(16):
        a(f'ds_read_b32 v{8+k}, v{IX+k}\nds_read_b32 v{24+k}, v{IX+k} offset:{KC_SZ}')
    a(f'''s_lshl_b32 s50, s91, 11
s_add_u32 s50, s50, s92
s_add_u32 s50, s50, {R_OFF}
v_lshlrev_b32 v4, 4, v1
v_add_u32 v4, s50, v4
v_mov_b32 v40, 0
v_mov_b32 v41, 0
v_mov_b32 v42, 0
v_mov_b32 v43, 0
s_waitcnt lgkmcnt(0)''')
    for k in range(0, 16, 2):
        a(f'''v_pk_add_f32 v[{8+k}:{9+k}], v[{8+k}:{9+k}], v[{24+k}:{25+k}]
v_cvt_pk_bf16_f32 v{48+k//2}, v{8+k}, v{9+k}''')
    a(f'''ds_write_b128 v4, v[48:51]
ds_write_b128 v4, v[52:55] offset:1024
v_mov_b32 v5, s92
ds_write_b128 v5, v[40:43] offset:{R_OFF + 4096}
s_waitcnt lgkmcnt(0)
s_barrier
ds_read_b128 v[8:11], v4
ds_read_b128 v[12:15], v4 offset:16
ds_read_b128 v[24:27], v4 offset:1024
ds_read_b128 v[28:31], v4 offset:1040''')
    a(f'''s_lshl_b32 s50, s91, 7
v_add_u32 v5, s50, v1
v_sub_u32 v5, {258-64}, v5
v_and_b32 v6, 7, v5
v_lshlrev_b32 v5, 7, v5
v_lshl_add_u32 v5, v6, 4, v5
v_add_u32 v5, s92, v5
v_lshl_add_u32 v6, v1, 4, s92
v_cmp_gt_u32 s[82:83], 24, v1
s_cmp_eq_u32 s91, 0
s_cselect_b32 s82, s82, 0
s_cselect_b32 s83, s83, 0
s_waitcnt lgkmcnt(0)
s_barrier
s_mov_b64 exec, s[82:83]
ds_write_b128 v6, v[40:43]
s_mov_b64 exec, -1''')
    for rp in range(2):
        E = 8 + 16*rp; Q0 = 48; Q1 = 54; E1 = 60
        for k in range(6):
            a(f'v_alignbit_b32 v{Q0+k}, v{E+k+1}, v{E+k}, 16')
            a(f'v_alignbit_b32 v{Q1+k}, v{E+k+2}, v{E+k+1}, 16')
            a(f'v_mov_b32 v{E1+k}, v{E+k+1}')
        for rho in range(8):
            src = [E, Q0, E1, Q1, E+2, Q0+2, E1+2, Q1+2][rho]
            a(f'v_xor_b32 v7, {16*(7-rho)}, v5')
            a(f'ds_write_b128 v7, v[{src}:{src+3}] offset:{8192 if rp == 0 else 0}')
    srd(a, 56, 44, 45, G_BYTES, WS_G)
    a(f's_waitcnt vmcnt({sum(USPL)})')
    for k in range(2):
        b = 124 + 4*k
        for i in range(4):
            a(f'''v_lshlrev_b32 v8, 16, v{b+i}
v_and_b32 v9, 0xffff0000, v{b+i}
v_lshlrev_b32 v12, 16, v{120+i}
v_and_b32 v13, 0xffff0000, v{120+i}
v_pk_mul_f32 v[8:9], v[8:9], v[12:13]
v_cvt_pk_bf16_f32 v8, v8, v9
v_and_b32 v9, 0xffff0000, v8
v_lshlrev_b32 v8, 16, v8''')
            if i == 0: a('v_pk_add_f32 v[10:11], v[8:9], 0 op_sel_hi:[1,0]')
            else: a('v_pk_add_f32 v[10:11], v[10:11], v[8:9]')
        a(f'v_add_f32 v{14+k}, v10, v11')
    dpp_reduce(a, 'v_add_f32', [14, 15])
    a(f'''v_readlane_b32 s48, v14, 63
v_readlane_b32 s50, v15, 63
v_mov_b32 v8, s48
v_writelane_b32 v8, s50, 1
v_cvt_pk_bf16_f32 v8, v8, v8
v_lshlrev_b32 v8, 16, v8
v_mul_f32 v8, {f2u(-LOG2E)}, v8
v_exp_f32 v8, v8
v_add_f32 v8, 1.0, v8
v_rcp_f32 v8, v8
v_cvt_pk_bf16_f32 v8, v8, v8
v_lshlrev_b32 v8, 16, v8
s_lshl_b32 s48, s3, 2
s_add_u32 s48, s48, s49
s_lshl_b32 s48, s48, 3
v_lshlrev_b32 v9, 2, v1
s_mov_b64 exec, 3
buffer_store_dword v8, v9, s[56:59], s48 offen
s_mov_b64 exec, -1''')
    a(f'''v_lshrrev_b32 v5, 5, v0
v_mul_u32_u24 v5, 80, v5
v_and_b32 v6, 31, v0
v_lshlrev_b32 v6, 1, v6
v_add_u32 v5, v5, v6
v_add_u32 v5, {UT0 + 32*80}, v5
s_waitcnt vmcnt(1)''')
    for i in range(8):
        a(f'ds_write_b16 v5, v{112+i} offset:{640*i}\nds_write_b16_d16_hi v5, v{112+i} offset:{640*i + UT_CH}')
    a(f'''v_and_b32 v8, 31, v1
v_lshrrev_b32 v9, 5, v1
v_lshrrev_b32 v10, 3, v8
v_sub_u32 v10, v10, v9
s_lshl_b32 s50, s91, 1
s_sub_u32 s50, 3, s50
v_add_u32 v10, s50, v10
v_and_b32 v11, 7, v8
v_xor_b32 v11, v11, v10
v_and_b32 v11, 7, v11
v_lshlrev_b32 v10, 7, v10
v_lshl_add_u32 v10, v11, 4, v10
v_add_u32 v4, s92, v10
v_xor_b32 v5, 64, v4
v_mul_u32_u24 v10, 80, v8
v_lshl_add_u32 v10, v9, 4, v10
s_lshl_b32 s50, s91, 5
s_add_u32 s50, s50, s93
s_add_u32 s50, s50, {32*80 - 80*31}
v_add_u32 v6, s50, v10''')
    A0, A1 = 192, 208
    a('s_waitcnt lgkmcnt(0)\ns_barrier')
    PR.stamp(a)
    FS = [64, 80, 96]
    def rd(d):
        f = FS[d % 3]; va = 4 if d % 2 == 0 else 5
        a(f'''ds_read_b128 v[{f}:{f+3}], v{va} offset:{512*d}
ds_read_b128 v[{f+8}:{f+11}], v6 offset:{80*(31-d)}
ds_read_b128 v[{f+12}:{f+15}], v6 offset:{80*(31-d)+2560}
ds_read_b128 v[{f+4}:{f+7}], v{va} offset:{512*d+16384}''')
    rd(0); rd(1)
    for d in range(32):
        if d + 2 < 32: rd(d+2)
        rem = min(2, 31-d)
        a(f's_waitcnt lgkmcnt({4*rem})')
        f = FS[d % 3]
        c0 = '0' if d == 0 else f'v[{A0}:{A0+15}]'; c1 = '0' if d == 0 else f'v[{A1}:{A1+15}]'
        a(f'''v_mfma_f32_32x32x16_bf16 v[{A0}:{A0+15}], v[{f}:{f+3}], v[{f+8}:{f+11}], {c0}
v_mfma_f32_32x32x16_bf16 v[{A1}:{A1+15}], v[{f}:{f+3}], v[{f+12}:{f+15}], {c1}
v_mfma_f32_32x32x16_bf16 v[{A1}:{A1+15}], v[{f+4}:{f+7}], v[{f+8}:{f+11}], v[{A1}:{A1+15}]''')
    PR.stamp(a)
    a('s_nop 15\ns_nop 3\ns_cmp_eq_u32 s91, 0\ns_cbranch_scc1 CV_NOSWAP')
    for i in range(16): a(f'v_swap_b32 v{A0+i}, v{A1+i}')
    a(f'''CV_NOSWAP:
s_lshl_b32 s50, s91, 12
s_add_u32 s50, s50, s92
v_lshl_add_u32 v4, v1, 4, s50
v_xor_b32 v5, 4096, v4
s_barrier''')
    for q in range(4):
        a(f'ds_write_b128 v4, v[{A1+4*q}:{A1+4*q+3}] offset:{1024*q}')
    a(f'''v_and_b32 v8, 31, v1
v_lshrrev_b32 v9, 5, v1
v_mul_u32_u24 v10, 80, v8
v_lshl_add_u32 v10, v9, 3, v10
s_mul_i32 s50, s91, 2560
s_add_u32 s50, s50, s93
s_add_u32 s50, s50, 2560
v_add_u32 v6, s50, v10
v_lshlrev_b32 v10, 6, v8
v_lshl_add_u32 v10, v9, 3, v10
s_lshl_b32 s50, s47, 12
s_lshl_b32 s48, s91, 11
s_add_u32 s50, s50, s48
v_add_u32 v7, s50, v10
v_mov_b32 v2, s81
v_mov_b32 v3, s81''')
    for q in range(4):
        a(f'ds_read_b64 v[{64+2*q}:{65+2*q}], v6 offset:{16*q}')
    a('s_waitcnt lgkmcnt(0)\ns_barrier')
    for q in range(4):
        a(f'ds_read_b128 v[{80+4*q}:{83+4*q}], v5 offset:{1024*q}')
    a('s_waitcnt lgkmcnt(0)')
    for q in range(4):
        ur = 64 + 2*q
        for p in range(2):
            y0 = A0 + 4*q + 2*p; o0 = 80 + 4*q + 2*p
            a(f'''v_pk_add_f32 v[{y0}:{y0+1}], v[{y0}:{y0+1}], v[{o0}:{o0+1}]
v_lshlrev_b32 v8, 16, v{ur+p}
v_and_b32 v9, 0xffff0000, v{ur+p}
v_pk_mul_f32 v[8:9], v[8:9], v[2:3]
v_cvt_pk_bf16_f32 v8, v8, v9
v_cvt_pk_bf16_f32 v10, v{y0}, v{y0+1}
v_and_b32 v9, 0xffff0000, v8
v_lshlrev_b32 v8, 16, v8
v_and_b32 v11, 0xffff0000, v10
v_lshlrev_b32 v10, 16, v10
v_pk_add_f32 v[8:9], v[8:9], v[10:11]
v_cvt_pk_bf16_f32 v{ur+p}, v8, v9''')
        a(f'buffer_store_dwordx2 v[{ur}:{ur+1}], v7, s[72:75], 0 offen offset:{16*q} {STF}')
    a('s_waitcnt vmcnt(0)') if PROF else None
    PR.dump(a, 0)
    a('s_endpgm')

def kernel1(a):
    a('.p2align 8')
    a.l.append('k1_kernel:')
    a(f's_cmp_ge_u32 s2, {K1_GRID}\ns_cbranch_scc1 K1_EXIT')
    load_ptrs(a)
    if CF:
        a(f's_mov_b32 s3, s2\ns_cmp_lt_u32 s2, {N_CONV}\ns_cbranch_scc1 CONV')
        if P2D:
            a(f's_sub_u32 s46, s2, {N_CONV}\ns_and_b32 s46, s46, 0xC6\ns_cmp_eq_u32 s46, 0xC6\ns_cbranch_scc1 AUX_J\ns_branch G1_J')
        else:
            a(f's_cmp_lt_u32 s2, {N_CONV+N_G1}\ns_cbranch_scc1 G1_J\ns_branch AUX_J')
    else:
        a(f's_cmp_lt_u32 s2, {N_G1}\ns_cbranch_scc1 G1_J')
        a(f's_cmp_lt_u32 s2, {N_G1+N_AUX}\ns_cbranch_scc1 AUX_J')
        a(f's_sub_u32 s3, s2, {N_G1+N_AUX}\ns_branch CONV')
    a('AUX_J:\ns_branch AUX')
    a('G1_J:\ns_branch G1')
    a('K1_EXIT:\ns_endpgm')
    conv(a); gemm1_full(a); aux(a)

def kernel2(a):
    a('.p2align 8')
    a.l.append('k2_kernel:')
    a('s_cmp_ge_u32 s2, 256\ns_cbranch_scc1 K2_EXIT')
    load_ptrs(a)
    PR.stamp(a)
    a('''s_lshr_b32 s46, s2, 5
s_and_b32 s47, s2, 7
s_lshl_b32 s47, s47, 2
s_bfe_u32 s48, s2, 0x20003
s_add_u32 s47, s47, s48''')
    srd(a, 52, 44, 45, HF_BYTES, WS_HF)
    srd(a, 56, 44, 45, WD_BYTES, WS_WD)
    srd(a, 60, 44, 45, A_BYTES, WS_A)
    srd(a, 64, 44, 45, G_BYTES, WS_G)
    srd(a, 68, 40, 41, A_BYTES)
    a('v_lshlrev_b32 v2, 4, v1')
    a(f'''s_mul_i32 s72, s46, {2*43*2048}
s_add_u32 s73, s72, {43*2048}
s_mul_i32 s74, s47, {2*43*2048}
s_add_u32 s75, s74, {43*2048}''')
    ACC = [192, 208, 224, 240]
    SETS = [32, 64, 96, 128]
    NS = len(SETS)
    NB = 11
    vm = VM(a)
    def loads(i):
        st = SETS[i % NS]
        a(f'''s_add_u32 s76, s49, {4*i}
s_min_u32 s76, s76, 42
s_lshl_b32 s76, s76, 11''')
        for j in range(2):
            a(f's_add_u32 s77, s76, s{72+j}')
            for t in range(2):
                r = st + 8*j + 4*t
                a(f'buffer_load_dwordx4 v[{r}:{r+3}], v2, s[56:59], s77 offen offset:{1024*t}'); vm.issue(i)
        for j in range(2):
            a(f's_add_u32 s77, s76, s{74+j}')
            for t in range(2):
                r = st + 16 + 8*j + 4*t
                a(f'buffer_load_dwordx4 v[{r}:{r+3}], v2, s[52:55], s77 offen offset:{1024*t}'); vm.issue(i)
    for i in range(NS): loads(i)
    a('''s_and_b32 s76, s49, 1
s_lshr_b32 s77, s49, 1
s_lshl_b32 s78, s47, 6
s_lshl_b32 s79, s77, 5
s_add_u32 s78, s78, s79
v_and_b32 v4, 31, v1
v_add_u32 v4, s78, v4
v_lshlrev_b32 v5, 2, v4
v_lshlrev_b32 v3, 1, v4
v_lshlrev_b32 v4, 10, v4
s_lshl_b32 s78, s46, 6
s_lshl_b32 s79, s76, 5
s_add_u32 s78, s78, s79
v_lshrrev_b32 v6, 5, v1
v_lshlrev_b32 v7, 3, v6
v_add_u32 v4, v4, v7
s_lshl_b32 s79, s78, 1
v_add_u32 v4, s79, v4
v_lshlrev_b32 v6, 14, v6
v_add_u32 v3, v3, v6
s_lshl_b32 s78, s78, 12
buffer_load_dword v7, v5, s[64:67], 0 offen''')
    vm.issue('e')
    for q in range(4):
        for e in range(4):
            a(f's_add_u32 s79, s78, {(8*q+e)*4096}\nbuffer_load_ushort v{8+4*q+e}, v3, s[60:63], s79 offen'); vm.issue('e')
    for r in range(192, 256): a(f'v_mov_b32 v{r}, 0')
    for i in range(NB):
        vm.wait(i)
        if i in (0, 4, 8): PR.stamp(a)
        if i == NB-1:
            a('s_cmp_eq_u32 s49, 3\ns_cbranch_scc1 K2_RED')
        st = SETS[i % NS]
        for t in range(2):
            for tj in range(2):
                for dj in range(2):
                    c = ACC[dj + 2*tj]
                    ra = st + 8*dj + 4*t; rb = st + 16 + 8*tj + 4*t
                    a(f'v_mfma_f32_32x32x16_bf16 v[{c}:{c+15}], v[{ra}:{ra+3}], v[{rb}:{rb+3}], v[{c}:{c+15}]')
        if i + NS < NB: loads(i+NS)
    a('K2_RED:\ns_nop 15')
    PR.stamp(a)
    a('s_lshl_b32 s76, s49, 14\nv_add_u32 v24, s76, v2')
    for tl in range(4):
        for q in range(4):
            r = ACC[tl] + 4*q
            a(f'ds_write_b128 v24, v[{r}:{r+3}] offset:{4096*tl + 1024*q}')
    a('''s_waitcnt lgkmcnt(0)
s_barrier
s_lshl_b32 s76, s49, 12
v_add_u32 v24, s76, v2''')
    for q in range(4):
        for wv in range(4):
            r = 64 + 16*wv + 4*q
            a(f'ds_read_b128 v[{r}:{r+3}], v24 offset:{16384*wv + 1024*q}')
    a('''s_waitcnt vmcnt(0)
v_sub_f32 v26, 1.0, v7
v_cvt_pk_bf16_f32 v26, v26, v26
v_lshlrev_b32 v26, 16, v26
v_mov_b32 v27, v26
v_mov_b32 v28, v7
v_mov_b32 v29, v7''')
    for q in range(4):
        a(f's_waitcnt lgkmcnt({4*(3-q)})')
        for p in range(2):
            r0 = 64 + 4*q + 2*p
            a(f'''v_pk_add_f32 v[{r0}:{r0+1}], v[{r0}:{r0+1}], v[{r0+16}:{r0+17}]
v_pk_add_f32 v[{r0+32}:{r0+33}], v[{r0+32}:{r0+33}], v[{r0+48}:{r0+49}]
v_pk_add_f32 v[{r0}:{r0+1}], v[{r0}:{r0+1}], v[{r0+32}:{r0+33}]''')
            a0 = 8 + 4*q + 2*p
            a(f'''v_cvt_pk_bf16_f32 v40, v{r0}, v{r0+1}
v_and_b32 v41, 0xffff0000, v40
v_lshlrev_b32 v40, 16, v40
v_pk_mul_f32 v[40:41], v[40:41], v[26:27]
v_cvt_pk_bf16_f32 v40, v40, v41
v_lshlrev_b32 v42, 16, v{a0}
v_lshlrev_b32 v43, 16, v{a0+1}
v_pk_mul_f32 v[42:43], v[42:43], v[28:29]
v_cvt_pk_bf16_f32 v42, v42, v43
v_and_b32 v41, 0xffff0000, v40
v_lshlrev_b32 v40, 16, v40
v_and_b32 v43, 0xffff0000, v42
v_lshlrev_b32 v42, 16, v42
v_pk_add_f32 v[40:41], v[40:41], v[42:43]
v_cvt_pk_bf16_f32 v{30+p}, v40, v41''')
        a(f'buffer_store_dwordx2 v[30:31], v4, s[68:71], 0 offen offset:{16*q}\ns_nop 1')
    a('s_waitcnt vmcnt(0)') if PROF else None
    PR.dump(a, 1)
    a('K2_EXIT:\ns_endpgm')

def kd(name, vgpr):
    return f'''.amdhsa_kernel {name}
  .amdhsa_next_free_vgpr {vgpr}
  .amdhsa_next_free_sgpr 102
  .amdhsa_accum_offset {vgpr}
  .amdhsa_group_segment_fixed_size 0
  .amdhsa_kernarg_size 120
  .amdhsa_user_sgpr_count 2
  .amdhsa_user_sgpr_kernarg_segment_ptr 1
  .amdhsa_system_sgpr_workgroup_id_x 1
.end_amdhsa_kernel
'''

def main(outp):
    a = Asm()
    a('.globl k1_kernel\n.type k1_kernel,@function')
    kernel1(a)
    a('.globl k2_kernel\n.type k2_kernel,@function')
    kernel2(a)
    body = a.text()
    s = HDR + f'; @launch kernel=k1_kernel grid=({K1_GRID},1,1) block=(256,1,1) lds={K1_LDS}\n'
    s += f'; @launch kernel=k2_kernel grid=(256,1,1) block=(256,1,1) lds={K2_LDS}\n'
    s += '.amdgcn_target "amdgcn-amd-amdhsa--gfx950"\n.text\n' + body
    s += '.section .rodata,"a"\n.p2align 6\n' + kd('k1_kernel', 256) + '.p2align 6\n' + kd('k2_kernel', 256)
    open(outp, 'w').write(s)

main(sys.argv[1] if len(sys.argv) > 1 else 'v4.s')
```
